```python
import torch

def _softmax(x, axis=-1):
    return torch.softmax(x, dim=axis)
def _gelu(x):
    return torch.nn.functional.gelu(x, approximate="tanh")
def _silu(x):
    return torch.nn.functional.silu(x)
def _sigmoid(x):
    return torch.sigmoid(x)
def _layernorm(x, axis=-1, eps=1e-5):
    m = x.mean(dim=axis, keepdim=True)
    v = x.var(dim=axis, keepdim=True, unbiased=False)
    return (x - m) / torch.sqrt(v + eps)
def _scatter_add(tgt, idx, src, axis=0):
    return tgt.clone().index_add_(axis, idx, src)
def _segment_sum(src, seg, n):
    out = torch.zeros((n,) + src.shape[1:], dtype=src.dtype)
    return out.index_add_(0, seg, src)
def _pad(x, pw):
    flat = tuple(v for pair in reversed(pw) for v in pair)
    return torch.nn.functional.pad(x, flat)

kernel_name = 'sequential_preLN__mha_block_cached__glu_gated_bilinear__decode'

def setup_inputs():

    _w = (lambda a: (lambda t: t.to(torch.bfloat16) if t.is_floating_point() else t)(torch.as_tensor(a)))
    def _A_setup():
        B, Sq, D = 2, 1, 640
        H, Sk, Dh = 32, 4096, 128
        return {
            "x": _w((lambda *s: torch.randn(*s, dtype=torch.bfloat16) * 0.05)(B, Sq, D)),
            "k_cache": _w((lambda *s: torch.randn(*s, dtype=torch.bfloat16) * 1.6)(B, H, Sk, Dh)),
            "v_cache": _w((lambda *s: torch.randn(*s, dtype=torch.bfloat16) * 0.8)(B, H, Sk, Dh)),
            "wq": _w((lambda *s: torch.randn(*s, dtype=torch.bfloat16) * 1.6)(D, H * Dh) * (D ** -0.5)),
            "wo": _w((lambda *s: torch.randn(*s, dtype=torch.bfloat16) * 0.8)(H * Dh, D) * ((H * Dh) ** -0.5)),
        }
    _A_in = _A_setup()

    def _B_setup():
        B, S, D, F = 2, 1, 640, 1728
        return {
            "x": _w((lambda *s: torch.randn(*s, dtype=torch.bfloat16) * 0.05)(B, S, D)),
            "w_gate": _w((lambda *s: torch.randn(*s, dtype=torch.bfloat16) * 0.4)(D, F) * (D ** -0.5)),
            "w_up": _w((lambda *s: torch.randn(*s, dtype=torch.bfloat16) * 0.4)(D, F) * (D ** -0.5)),
            "w_down": _w((lambda *s: torch.randn(*s, dtype=torch.bfloat16) * 0.4)(F, D) * (F ** -0.5)),
        }
    _B_in = _B_setup()

    return {
        "A_x": _A_in["x"],
        "A_k_cache": _A_in["k_cache"],
        "A_v_cache": _A_in["v_cache"],
        "A_wq": _A_in["wq"],
        "A_wo": _A_in["wo"],
        "B_x": _B_in["x"],
        "B_w_gate": _B_in["w_gate"],
        "B_w_up": _B_in["w_up"],
        "B_w_down": _B_in["w_down"],
    }

def reference(A_x, A_k_cache, A_v_cache, A_wq, A_wo, B_x, B_w_gate, B_w_up, B_w_down):
    def _A_ref(x, k_cache, v_cache, wq, wo):
        B, Sq, D = x.shape
        H, Dh = 32, 128
        q = (lambda x, *d: x.permute(*d))((x @ wq).reshape(B, Sq, H, Dh), 0, 2, 1, 3)
        scores = torch.einsum("bhqd,bhkd->bhqk", q, k_cache) * (Dh ** -0.5)
        p = _softmax(scores, axis=-1)
        o = torch.einsum("bhqk,bhkd->bhqd", p, v_cache)
        return (lambda x, *d: x.permute(*d))(o, 0, 2, 1, 3).reshape(B, Sq, H * Dh) @ wo

    def _B_ref(x, w_gate, w_up, w_down):
        g = torch.einsum("bsd,df->bsf", x, w_gate)
        u = torch.einsum("bsd,df->bsf", x, w_up)
        h = g * u
        return torch.einsum("bsf,fd->bsd", h, w_down)

    x = A_x
    h = x + _A_ref(_layernorm(x, axis=-1), A_k_cache, A_v_cache, A_wq, A_wo)
    h2 = h + _B_ref(_layernorm(h, axis=-1), B_w_gate, B_w_up, B_w_down)
    return h2
```

```python
import sys

NAME = 'sequential_preLN__mha_block_cached__glu_gated_bilinear__decode_kernel'
OPT = dict(a.split('=') for a in sys.argv[1:] if '=' in a)
TS = int(OPT.get('ts', 0))
KVFLAG = OPT.get('kv', 'nt')
WFLAG = OPT.get('w', 'nt')
if KVFLAG == '-': KVFLAG = ''
if WFLAG == '-': WFLAG = ''

out = []
def E(s):
    out.append('  ' + s)
def L(s):
    out.append(s + ':')
def C(s):
    out.append('  ; ' + s)

ML_B = 0x0
O_B = 0x10000
Y_B = 0x40000
H_B = 0x80000
Z_B = 0x100000
ZS = 108 * 64
TS_B = 0x800000
WS_BYTES = 0x10000000
L_QP = 0x0
L_QBF = 0x2000
L_ML = 0x2100
L_OBF = 0x2200
L_L2 = 0x2C00
L_P = 0x3600
L_DUMMY = 0x3A00
L_WO = 0x4000
L_GU = 0xA800
L_DN = 0x14800
LDS_BYTES = 0x1A800

S_K, S_V, S_WQ, S_WS, S_X, S_A, S_B, S_DBG, S_OUT = 40, 44, 48, 52, 56, 60, 64, 68, 72
sW, sH, sBb, sQT, sR, sKV, sROLE, sIDX, sMU, sXCD = 76, 77, 78, 79, 80, 81, 82, 83, 84, 85
sSELLO, sSELHI, sSPIN, sT0, sT1, sT2, sT3 = 86, 87, 88, 89, 90, 91, 92
sSCALE, sLOG2E = 93, 94
sEX = 96
sTS = 98

def srd(n): return 's[%d:%d]' % (n, n + 3)
def vr(a, n): return 'v[%d:%d]' % (a, a + n - 1)
DPP = ' row_mask:0xf bank_mask:0xf'

def stamp(idx):
    if not TS: return
    E('s_memrealtime s[%d:%d]' % (sTS, sTS + 1))
    E('s_waitcnt lgkmcnt(0)')
    E('v_mov_b32 v22, s%d' % sTS)
    E('s_lshl_b32 s%d, s2, 7' % sT3)
    E('s_add_u32 s%d, s%d, %d' % (sT3, sT3, TS_B + idx * 4))
    E('v_mov_b32 v18, s%d' % sT3)
    E('buffer_store_dword v22, v18, %s, 0 offen' % srd(S_WS))

def wave_allreduce(v, tmp, op):
    ins = 'v_%s_f32' % op
    E('s_nop 1')
    E('%s_dpp v%d, v%d, v%d quad_perm:[1,0,3,2]%s' % (ins, v, v, v, DPP))
    E('s_nop 1')
    E('%s_dpp v%d, v%d, v%d quad_perm:[2,3,0,1]%s' % (ins, v, v, v, DPP))
    E('s_nop 1')
    E('%s_dpp v%d, v%d, v%d row_half_mirror%s' % (ins, v, v, v, DPP))
    E('s_nop 1')
    E('%s_dpp v%d, v%d, v%d row_mirror%s' % (ins, v, v, v, DPP))
    rows_allreduce(v, tmp, op)

def rows_allreduce(v, tmp, op):
    ins = 'v_%s_f32' % op
    E('v_mov_b32 v%d, v%d' % (tmp, v))
    E('s_nop 1')
    E('v_permlane32_swap_b32 v%d, v%d' % (v, tmp))
    E('%s v%d, v%d, v%d' % (ins, v, v, tmp))
    E('v_mov_b32 v%d, v%d' % (tmp, v))
    E('s_nop 1')
    E('v_permlane16_swap_b32 v%d, v%d' % (v, tmp))
    E('%s v%d, v%d, v%d' % (ins, v, v, tmp))

def rne_bf16(v):
    E('v_cvt_pk_bf16_f32 v%d, v%d, v%d' % (v, v, v))
    E('v_and_b32 v%d, 0xffff0000, v%d' % (v, v))

def layernorm(X, F, T):
    for i in range(5):
        E('v_lshlrev_b32 v%d, 16, v%d' % (F + 2 * i, X + i))
        E('v_and_b32 v%d, 0xffff0000, v%d' % (F + 2 * i + 1, X + i))
    E('v_add_f32 v%d, v%d, v%d' % (T, F, F + 1))
    E('v_add_f32 v%d, v%d, v%d' % (T + 1, F + 2, F + 3))
    for i in (4, 6, 8):
        E('v_add_f32 v%d, v%d, v%d' % (T, T, F + i))
        E('v_add_f32 v%d, v%d, v%d' % (T + 1, T + 1, F + i + 1))
    E('v_add_f32 v%d, v%d, v%d' % (T, T, T + 1))
    wave_allreduce(T, T + 1, 'add')
    E('v_mul_f32 v%d, 0x3acccccd, v%d' % (T, T))
    E('v_sub_f32 v%d, v%d, v%d' % (T + 2, F, T))
    E('v_mul_f32 v%d, v%d, v%d' % (T + 1, T + 2, T + 2))
    for i in range(1, 10):
        E('v_sub_f32 v%d, v%d, v%d' % (T + 2, F + i, T))
        E('v_fmac_f32 v%d, v%d, v%d' % (T + 1, T + 2, T + 2))
    wave_allreduce(T + 1, T + 2, 'add')
    E('v_mul_f32 v%d, 0x3acccccd, v%d' % (T + 1, T + 1))
    rne_bf16(T)
    rne_bf16(T + 1)
    E('v_add_f32 v%d, 0x3727c5ac, v%d' % (T + 1, T + 1))
    rne_bf16(T + 1)
    E('v_sqrt_f32 v%d, v%d' % (T + 1, T + 1))
    E('s_nop 0')
    rne_bf16(T + 1)
    E('v_rcp_f32 v%d, v%d' % (T + 2, T + 1))
    for i in range(5):
        a, b = F + 2 * i, F + 2 * i + 1
        E('v_sub_f32 v%d, v%d, v%d' % (a, a, T))
        E('v_sub_f32 v%d, v%d, v%d' % (b, b, T))
        E('v_cvt_pk_bf16_f32 v%d, v%d, v%d' % (X + i, a, b))
        E('v_lshlrev_b32 v%d, 16, v%d' % (a, X + i))
        E('v_and_b32 v%d, 0xffff0000, v%d' % (b, X + i))
        for r in (a, b):
            E('v_mul_f32 v%d, v%d, v%d' % (T + 3, r, T + 2))
            E('v_fma_f32 v%d, -v%d, v%d, v%d' % (r, T + 3, T + 1, r))
            E('v_fma_f32 v%d, v%d, v%d, v%d' % (r, r, T + 2, T + 3))
        E('v_cvt_pk_bf16_f32 v%d, v%d, v%d' % (X + i, a, b))

def pair_gemv(Wa, Wb, Lp, ACC, T, first=False):
    for d in range(4):
        t0, t1 = T + (2 * d) % 4, T + (2 * d + 1) % 4
        E('v_perm_b32 v%d, v%d, v%d, s%d' % (t0, Wb + d, Wa + d, sSELLO))
        E('v_perm_b32 v%d, v%d, v%d, s%d' % (t1, Wb + d, Wa + d, sSELHI))
        if first:
            E('v_dot2_f32_bf16 v%d, v%d, v%d, 0' % (ACC + 2 * d, t0, Lp))
            E('v_dot2_f32_bf16 v%d, v%d, v%d, 0' % (ACC + 2 * d + 1, t1, Lp))
        else:
            E('v_dot2c_f32_bf16 v%d, v%d, v%d' % (ACC + 2 * d, t0, Lp))
            E('v_dot2c_f32_bf16 v%d, v%d, v%d' % (ACC + 2 * d + 1, t1, Lp))

def acc8_rows_reduce(A):
    E('s_nop 2')
    for i in range(4):
        E('v_permlane32_swap_b32 v%d, v%d' % (A + i, A + 4 + i))
    for i in range(4):
        E('v_add_f32 v%d, v%d, v%d' % (A + i, A + i, A + 4 + i))
    E('s_nop 0')
    E('v_permlane16_swap_b32 v%d, v%d' % (A, A + 2))
    E('v_permlane16_swap_b32 v%d, v%d' % (A + 1, A + 3))
    E('v_add_f32 v%d, v%d, v%d' % (A, A, A + 2))
    E('v_add_f32 v%d, v%d, v%d' % (A + 1, A + 1, A + 3))

def wg_partial_sum(R, ADDR):
    E('v_and_b32 v%d, 31, v0' % ADDR)
    E('v_lshlrev_b32 v%d, 4, v%d' % (ADDR, ADDR))
    E('v_lshrrev_b32 v%d, 5, v0' % (R))
    E('v_lshl_add_u32 v%d, v%d, 12, v%d' % (ADDR, R, ADDR))
    for i in range(8):
        E('ds_read_b128 %s, v%d offset:%d' % (vr(R + 4 * i, 4), ADDR, L_QP + i * 512))
    for i in range(1, 8):
        E('s_waitcnt lgkmcnt(%d)' % (7 - i))
        for k in range(4):
            E('v_add_f32 v%d, v%d, v%d' % (R + k, R + k, R + 4 * i + k))
    E('s_nop 1')
    E('v_permlane32_swap_b32 v%d, v%d' % (R, R + 2))
    E('v_permlane32_swap_b32 v%d, v%d' % (R + 1, R + 3))
    E('v_add_f32 v%d, v%d, v%d' % (R, R, R + 2))
    E('v_add_f32 v%d, v%d, v%d' % (R + 1, R + 1, R + 3))

def spin_guard(label_bail):
    E('s_add_u32 s%d, s%d, 1' % (sSPIN, sSPIN))
    E('s_cmp_gt_u32 s%d, 0x200000' % sSPIN)
    E('s_cbranch_scc1 %s' % label_bail)

def build_srd(n, ptr, nbytes):
    E('s_mov_b32 s%d, s%d' % (n, ptr))
    E('s_mov_b32 s%d, s%d' % (n + 1, ptr + 1))
    E('s_mov_b32 s%d, 0x%x' % (n + 2, nbytes))
    E('s_mov_b32 s%d, 0x20000' % (n + 3))

out.append('; @launch grid=(256,1,1) block=(1024,1,1) lds=%d' % LDS_BYTES)
out.append('.amdgcn_target "amdgcn-amd-amdhsa--gfx950"')
out.append('.text')
out.append('.globl %s' % NAME)
out.append('.p2align 8')
out.append('.type %s,@function' % NAME)
L(NAME)
E('s_cmp_ge_u32 s2, 256')
E('s_cbranch_scc1 L_end')
E('s_load_dwordx16 s[16:31], s[0:1], 0')
E('s_load_dwordx8 s[32:39], s[0:1], 64')
E('v_lshrrev_b32 v3, 6, v0')
E('v_and_b32 v0, 63, v0')
E('v_readfirstlane_b32 s%d, v3' % sW)
E('v_lshlrev_b32 v1, 4, v0')
E('s_and_b32 s%d, s2, 7' % sXCD)
E('s_lshr_b32 s4, s2, 3')
E('s_and_b32 s%d, s4, 3' % sMU)
E('s_lshl_b32 s%d, s%d, 2' % (sH, sXCD))
E('s_add_u32 s%d, s%d, s%d' % (sH, sH, sMU))
E('s_lshr_b32 s%d, s4, 2' % sR)
E('s_lshr_b32 s%d, s%d, 2' % (sBb, sR))
E('s_and_b32 s%d, s%d, 3' % (sQT, sR))
E('s_lshl_b32 s5, s%d, 5' % sBb)
E('s_add_u32 s5, s5, s%d' % sH)
E('s_lshl_b32 s%d, s5, 20' % sKV)
E('s_lshl_b32 s6, s%d, 18' % sQT)
E('s_add_u32 s%d, s%d, s6' % (sKV, sKV))
E('s_lshl_b32 s6, s%d, 14' % sW)
E('s_add_u32 s%d, s%d, s6' % (sKV, sKV))
E('s_mov_b32 s%d, 0' % sROLE)
E('s_lshl_b32 s6, s%d, 3' % sR)
E('s_add_u32 s6, s6, s%d' % sXCD)
E('s_lshl_b32 s%d, s6, 2' % sIDX)
E('s_add_u32 s%d, s%d, s%d' % (sIDX, sIDX, sMU))
E('s_cmp_lt_u32 s6, 27')
E('s_cselect_b32 s%d, 1, 0' % sROLE)
E('s_cmp_lt_u32 s%d, 4' % sR)
E('s_cbranch_scc1 L_roledone')
E('s_sub_u32 s6, s%d, 4' % sR)
E('s_lshl_b32 s6, s6, 5')
E('s_lshl_b32 s7, s%d, 3' % sMU)
E('s_add_u32 s6, s6, s7')
E('s_add_u32 s%d, s6, s%d' % (sIDX, sXCD))
E('s_mov_b32 s%d, 2' % sROLE)
E('s_cmp_lt_u32 s%d, 40' % sIDX)
E('s_cbranch_scc1 L_roledone')
E('s_sub_u32 s%d, s%d, 40' % (sIDX, sIDX))
E('s_cmp_lt_u32 s%d, 80' % sIDX)
E('s_cselect_b32 s%d, 3, 0' % sROLE)
L('L_roledone')
E('s_mov_b32 s%d, 0x05040100' % sSELLO)
E('s_mov_b32 s%d, 0x07060302' % sSELHI)
E('s_mov_b32 s%d, 0x3db504f3' % sSCALE)
E('s_mov_b32 s%d, 0x3fb8aa3b' % sLOG2E)
E('s_mov_b32 s%d, 0' % sSPIN)
E('v_lshrrev_b32 v4, 4, v0')
E('v_and_b32 v5, 15, v0')
E('s_mov_b32 s6, %d' % (160 * 8192))
E('v_mul_lo_u32 v2, v4, s6')
E('v_lshl_add_u32 v2, v5, 4, v2')
E('v_mul_u32_u24 v3, 20, v0')
E('s_mul_i32 s6, s%d, 1280' % sBb)
E('v_add_u32 v3, s6, v3')
E('v_mov_b32 v8, -1')
E('v_mov_b32 v9, -1')
E('v_mov_b32 v10, -1')
E('v_mov_b32 v11, -1')
E('s_waitcnt lgkmcnt(0)')
build_srd(S_X, 16, 2560)
build_srd(S_K, 18, 0x4000000)
build_srd(S_V, 20, 0x4000000)
build_srd(S_WQ, 22, 640 * 8192)
build_srd(S_WS, 38, WS_BYTES)
build_srd(S_DBG, 36, 256)
build_srd(S_OUT, 34, 2560)
stamp(0)
C('sentinel resets')
E('s_cmp_eq_u32 s%d, 0' % sW)
E('s_cbranch_scc0 L_rs1')
E('s_lshl_b32 s6, s%d, 12' % sH)
E('s_lshl_b32 s7, s%d, 9' % sR)
E('s_add_u32 s6, s6, s7')
E('s_add_u32 s6, s6, %d' % O_B)
E('s_mov_b32 exec_lo, -1')
E('s_mov_b32 exec_hi, 0')
E('buffer_store_dwordx4 v[8:11], v1, %s, s6 offen sc1' % srd(S_WS))
E('s_lshl_b32 s6, s5, 5')
E('s_lshl_b32 s7, s%d, 3' % sQT)
E('s_add_u32 s6, s6, s7')
E('s_add_u32 s6, s6, %d' % ML_B)
E('s_mov_b64 exec, 1')
E('buffer_store_dwordx2 v[8:9], v1, %s, s6 offen sc1' % srd(S_WS))
E('s_branch L_rsdone')
L('L_rs1')
E('s_cmp_lt_u32 s%d, 6' % sW)
E('s_cbranch_scc0 L_rs2')
E('s_mul_i32 s6, s%d, 5' % sR)
E('s_add_u32 s6, s6, s%d' % sW)
E('s_sub_u32 s6, s6, 1')
E('s_lshl_b32 s6, s6, 12')
E('s_lshl_b32 s7, s%d, 7' % sH)
E('s_add_u32 s6, s6, s7')
E('s_add_u32 s6, s6, %d' % Y_B)
E('s_mov_b64 exec, 0xff')
E('buffer_store_dwordx4 v[8:11], v1, %s, s6 offen sc1' % srd(S_WS))
E('s_branch L_rsdone')
L('L_rs2')
E('s_cmp_eq_u32 s%d, 6' % sW)
E('s_cbranch_scc0 L_rs3')
E('s_cmp_eq_u32 s%d, 2' % sROLE)
E('s_cbranch_scc0 L_rsdone')
E('v_lshrrev_b32 v12, 1, v0')
E('v_mul_u32_u24 v12, 1280, v12')
E('v_and_b32 v13, 1, v0')
E('v_lshl_add_u32 v12, v13, 4, v12')
E('s_lshl_b32 s6, s%d, 5' % sIDX)
E('s_add_u32 s6, s6, %d' % H_B)
E('s_mov_b64 exec, 0xf')
E('buffer_store_dwordx4 v[8:11], v12, %s, s6 offen sc1' % srd(S_WS))
E('s_branch L_rsdone')
L('L_rs3')
E('s_cmp_lt_u32 s%d, 8' % sW)
E('s_cbranch_scc1 L_rsdone')
E('s_cmp_eq_u32 s%d, 1' % sROLE)
E('s_cbranch_scc0 L_rsdone')
E('v_lshrrev_b32 v12, 3, v0')
E('v_bfe_u32 v13, v0, 2, 1')
E('v_mul_u32_u24 v13, 40, v13')
E('v_add_u32 v12, v12, v13')
E('v_mul_u32_u24 v12, %d, v12' % ZS)
E('v_and_b32 v13, 3, v0')
E('v_lshl_add_u32 v12, v13, 4, v12')
E('s_sub_u32 s6, s%d, 8' % sW)
E('s_mul_i32 s6, s6, %d' % (5 * ZS))
E('s_lshl_b32 s7, s%d, 6' % sIDX)
E('s_add_u32 s6, s6, s7')
E('s_add_u32 s6, s6, %d' % Z_B)
E('s_mov_b32 exec_lo, -1')
E('s_mov_b32 exec_hi, 0xff')
E('buffer_store_dwordx4 v[8:11], v12, %s, s6 offen sc1' % srd(S_WS))
L('L_rsdone')
E('s_mov_b64 exec, -1')

WQ0, K0 = 24, 64
q = []
def issue(name, text):
    q.append(name); E(text)
def wait_for(name):
    if name not in q: return
    i = q.index(name)
    n = len(q) - 1 - i
    E('s_waitcnt vmcnt(%d)' % n)
    del q[:i + 1]

def kv_load(which, t, reg):
    E('s_add_u32 s6, s%d, %d' % (sKV, (t >> 2) * 4096))
    issue('%s%d' % (which, t), 'buffer_load_dwordx4 %s, v1, %s, s6 offen offset:%d %s' % (vr(reg, 4), srd(S_K if which == 'K' else S_V), (t & 3) * 1024, KVFLAG))

C('x, K0-3, WQ, K4-15')
issue('xa', 'buffer_load_dwordx4 v[4:7], v3, %s, 0 offen' % srd(S_X))
issue('xb', 'buffer_load_dword v8, v3, %s, 0 offen offset:16' % srd(S_X))
for t in range(4): kv_load('K', t, K0 + 4 * t)
E('s_mul_i32 s7, s%d, %d' % (sW, 10 * 8192))
E('s_lshl_b32 s6, s%d, 8' % sH)
E('s_add_u32 s7, s7, s6')
for t in range(10):
    if t: E('s_add_u32 s7, s7, 8192')
    issue('WQ%d' % t, 'buffer_load_dwordx4 %s, v2, %s, s7 offen %s' % (vr(WQ0 + 4 * t, 4), srd(S_WQ), WFLAG))
for t in range(4, 16): kv_load('K', t, K0 + 4 * t)

C('LN1')
wait_for('xb')
layernorm(4, 9, 19)
E('v_and_b32 v9, 48, v0')
E('v_add_u32 v9, s%d, v9' % sW)
E('v_lshlrev_b32 v9, 2, v9')
for i in range(5):
    E('ds_bpermute_b32 v%d, v9, v%d' % (10 + i, 4 + i))
E('s_waitcnt lgkmcnt(0)')
C('q partial')
for p in range(5):
    wait_for('WQ%d' % (2 * p + 1))
    pair_gemv(WQ0 + 8 * p, WQ0 + 8 * p + 4, 10 + p, 2, 15, first=(p == 0))
C('V0..9 into WQ area')
for t in range(10): kv_load('V', t, WQ0 + 4 * t)
acc8_rows_reduce(2)
E('v_and_b32 v10, 15, v0')
E('v_lshlrev_b32 v10, 5, v10')
E('v_lshrrev_b32 v11, 4, v0')
E('v_lshl_add_u32 v10, v11, 3, v10')
E('s_lshl_b32 s6, s%d, 9' % sW)
E('v_add_u32 v21, s6, v10')
E('ds_write_b64 v21, v[2:3] offset:%d' % L_QP)
E('s_waitcnt lgkmcnt(0)')
E('s_barrier')
E('s_cmp_eq_u32 s%d, 0' % sW)
E('s_cbranch_scc0 L_q2')
C('wave0: init counter + q final')
E('v_mov_b32 v2, 1')
E('s_mov_b64 exec, 1')
E('buffer_atomic_add v2, off, %s, 0 sc1' % srd(S_DBG))
E('s_mov_b64 exec, -1')
E('v_and_b32 v19, 31, v0')
E('v_lshlrev_b32 v19, 4, v19')
E('v_lshrrev_b32 v20, 5, v0')
E('v_lshl_add_u32 v19, v20, 12, v19')
for rnd in range(2):
    for i in range(4):
        if rnd == 0:
            E('ds_read_b128 %s, v19 offset:%d' % (vr(2 + 4 * i, 4), L_QP + i * 512))
        elif i < 3:
            E('ds_read_b128 %s, v19 offset:%d' % (vr(6 + 4 * i, 4), L_QP + (4 + i) * 512))
    if rnd == 0:
        E('s_waitcnt lgkmcnt(0)')
        for i in range(1, 4):
            for k in range(4): E('v_add_f32 v%d, v%d, v%d' % (2 + k, 2 + k, 2 + 4 * i + k))
    else:
        E('s_waitcnt lgkmcnt(0)')
        for i in range(3):
            for k in range(4): E('v_add_f32 v%d, v%d, v%d' % (2 + k, 2 + k, 6 + 4 * i + k))
E('ds_read_b128 v[6:9], v19 offset:%d' % (L_QP + 7 * 512))
E('s_waitcnt lgkmcnt(0)')
for k in range(4): E('v_add_f32 v%d, v%d, v%d' % (2 + k, 2 + k, 6 + k))
E('s_nop 1')
E('v_permlane32_swap_b32 v2, v4')
E('v_permlane32_swap_b32 v3, v5')
E('v_add_f32 v2, v2, v4')
E('v_add_f32 v3, v3, v5')
E('v_cvt_pk_bf16_f32 v2, v2, v3')
E('v_and_b32 v19, 31, v0')
E('v_lshlrev_b32 v19, 3, v19')
E('v_lshl_add_u32 v19, v20, 2, v19')
E('ds_write_b32 v19, v2 offset:%d' % L_QBF)
E('s_waitcnt lgkmcnt(0)')
L('L_q2')
E('s_barrier')
E('v_and_b32 v19, 15, v0')
E('v_lshlrev_b32 v19, 4, v19')
E('ds_read_b128 v[2:5], v19 offset:%d' % L_QBF)
E('s_waitcnt lgkmcnt(0)')
stamp(1)

C('K phase')
def Sreg(t): return 6 + t if t < 6 else K0 + 4 * t
def Vreg(t): return WQ0 + 4 * t if t < 10 else K0 + 4 * (t - 10)
for bt in range(4):
    ts = list(range(4 * bt, 4 * bt + 4))
    wait_for('K%d' % ts[-1])
    for t in ts:
        E('v_dot2_f32_bf16 v%d, v%d, v2, 0' % (Sreg(t), K0 + 4 * t))
    for d in range(1, 4):
        for t in ts:
            E('v_dot2c_f32_bf16 v%d, v%d, v%d' % (Sreg(t), K0 + 4 * t + d, 2 + d))
    if bt == 0:
        for t in range(10, 14): kv_load('V', t, Vreg(t))
    if bt == 1:
        for t in range(14, 16): kv_load('V', t, Vreg(t))
        C('tail weight DMA setup')
        build_srd(S_A, 24, 0)
        build_srd(S_B, 32, 0)
        E('s_mov_b32 s8, %d' % L_DUMMY)
        E('s_mov_b32 s9, 0')
        E('s_mov_b32 s10, 0')
        E('s_mov_b32 s11, 0')
        E('s_mov_b32 s12, 1280')
        E('s_mov_b32 s13, %d' % L_DUMMY)
        E('s_mov_b32 s14, 0')
        E('s_mov_b32 s3, 0')
        E('s_cmp_eq_u32 s%d, 0' % sW)
        E('s_cbranch_scc1 L_dma')
        E('s_cmp_lt_u32 s%d, 6' % sW)
        E('s_cbranch_scc0 L_dma_ffn')
        E('s_sub_u32 s6, s%d, 1' % sW)
        E('s_mul_i32 s8, s6, 5120')
        E('s_add_u32 s8, s8, %d' % L_WO)
        E('s_mov_b32 s9, 1024')
        E('s_mul_i32 s10, s%d, %d' % (sH, 128 * 1280))
        E('s_add_u32 s%d, s10, %d' % (S_A + 2, 128 * 1280))
        E('s_mul_i32 s7, s%d, 160' % sR)
        E('s_add_u32 s10, s10, s7')
        E('s_lshl_b32 s7, s6, 5')
        E('s_add_u32 s10, s10, s7')
        E('s_mov_b32 s11, %d' % (32 * 1280))
        E('s_branch L_dma')
        L('L_dma_ffn')
        E('s_cmp_lt_u32 s%d, 8' % sW)
        E('s_cbranch_scc1 L_dma')
        E('s_cmp_eq_u32 s%d, 1' % sROLE)
        E('s_cbranch_scc0 L_dma')
        E('s_sub_u32 s6, s%d, 8' % sW)
        E('s_and_b32 s7, s6, 1')
        E('s_cmp_eq_u32 s7, 0')
        E('s_cselect_b32 s%d, s28, s30' % S_A)
        E('s_cselect_b32 s%d, s29, s31' % (S_A + 1))
        E('s_mov_b32 s%d, %d' % (S_A + 2, 640 * 3456))
        E('s_mov_b32 s%d, %d' % (S_B + 2, 1728 * 1280))
        E('s_mul_i32 s8, s6, 5120')
        E('s_add_u32 s8, s8, %d' % L_GU)
        E('s_mov_b32 s9, 1024')
        E('s_lshr_b32 s7, s6, 1')
        E('s_mul_i32 s10, s7, %d' % (160 * 3456))
        E('s_lshl_b32 s7, s%d, 5' % sIDX)
        E('s_add_u32 s10, s10, s7')
        E('s_mov_b32 s11, %d' % (32 * 3456))
        E('s_mov_b32 s12, 3456')
        E('s_mul_i32 s13, s6, 3072')
        E('s_add_u32 s13, s13, %d' % L_DN)
        E('s_mov_b32 s3, 1024')
        E('s_mul_i32 s14, s%d, %d' % (sIDX, 16 * 1280))
        E('s_mul_i32 s7, s6, 160')
        E('s_add_u32 s14, s14, s7')
        L('L_dma')
        E('v_lshrrev_b32 v12, 1, v0')
        E('v_and_b32 v13, 1, v0')
        E('v_mul_lo_u32 v14, v12, s12')
        E('v_lshl_add_u32 v14, v13, 4, v14')
        E('v_and_b32 v12, 15, v12')
        E('v_mul_u32_u24 v15, 1280, v12')
        E('v_lshl_add_u32 v15, v13, 4, v15')
        E('v_lshrrev_b32 v12, 5, v0')
        E('v_lshl_add_u32 v15, v12, 5, v15')
        for i in range(5):
            E('s_mov_b32 m0, s8')
            E('s_add_u32 s8, s8, s9')
            issue('DA%d' % i, 'buffer_load_dwordx4 v14, %s, s10 offen %s lds' % (srd(S_A), WFLAG))
            E('s_add_u32 s10, s10, s11')
        for i in range(3):
            E('s_mov_b32 m0, s13')
            E('s_add_u32 s13, s13, s3')
            issue('DB%d' % i, 'buffer_load_dwordx4 v15, %s, s14 offen %s lds' % (srd(S_B), WFLAG))
            E('s_add_u32 s14, s14, 64')
        issue('CNT', 'buffer_load_dword v23, off, %s, 0 sc1' % srd(S_DBG))
    for step in ('quad_perm:[1,0,3,2]', 'quad_perm:[2,3,0,1]', 'row_half_mirror', 'row_mirror'):
        for t in ts:
            E('v_add_f32_dpp v%d, v%d, v%d %s%s' % (Sreg(t), Sreg(t), Sreg(t), step, DPP))
    for t in (ts[0], ts[2]):
        a, b = Sreg(t), Sreg(t + 1)
        E('v_cvt_pk_bf16_f32 v12, v%d, v%d' % (a, b))
        E('v_lshlrev_b32 v%d, 16, v12' % a)
        E('v_and_b32 v%d, 0xffff0000, v12' % b)
        E('v_mul_f32 v%d, s%d, v%d' % (a, sSCALE, a))
        E('v_mul_f32 v%d, s%d, v%d' % (b, sSCALE, b))
        E('v_cvt_pk_bf16_f32 v12, v%d, v%d' % (a, b))
        E('v_lshlrev_b32 v%d, 16, v12' % a)
        E('v_and_b32 v%d, 0xffff0000, v12' % b)
stamp(2)
C('wave max / exp / sum')
E('v_max3_f32 v12, v%d, v%d, v%d' % (Sreg(0), Sreg(1), Sreg(2)))
for t in range(3, 15, 2):
    E('v_max3_f32 v12, v12, v%d, v%d' % (Sreg(t), Sreg(t + 1)))
E('v_max_f32 v12, v12, v%d' % Sreg(15))
rows_allreduce(12, 13, 'max')
E('v_mul_f32 v13, s%d, v12' % sLOG2E)
for t in range(16):
    E('v_fma_f32 v%d, v%d, s%d, -v13' % (Sreg(t), Sreg(t), sLOG2E))
for t in range(16):
    E('v_exp_f32 v%d, v%d' % (Sreg(t), Sreg(t)))
E('s_nop 0')
E('v_add_f32 v14, v%d, v%d' % (Sreg(0), Sreg(1)))
E('v_add_f32 v15, v%d, v%d' % (Sreg(2), Sreg(3)))
for t in range(4, 16, 2):
    E('v_add_f32 v14, v14, v%d' % Sreg(t))
    E('v_add_f32 v15, v15, v%d' % Sreg(t + 1))
E('v_add_f32 v13, v14, v15')
rows_allreduce(13, 14, 'add')
E('s_lshl_b32 s6, s%d, 3' % sW)
E('v_mov_b32 v14, s6')
E('s_mov_b64 exec, 1')
E('ds_write_b64 v14, v[12:13] offset:%d' % L_ML)
E('s_mov_b64 exec, -1')
E('s_waitcnt lgkmcnt(0)')
E('s_barrier')
E('v_and_b32 v14, 15, v0')
E('v_lshlrev_b32 v14, 3, v14')
E('ds_read_b64 v[16:17], v14 offset:%d' % L_ML)
E('s_waitcnt lgkmcnt(0)')
E('v_mov_b32 v19, v16')
for step in ('quad_perm:[1,0,3,2]', 'quad_perm:[2,3,0,1]', 'row_half_mirror', 'row_mirror'):
    E('s_nop 1')
    E('v_max_f32_dpp v19, v19, v19 %s%s' % (step, DPP))
E('v_sub_f32 v16, v16, v19')
E('v_mul_f32 v16, s%d, v16' % sLOG2E)
E('v_exp_f32 v16, v16')
E('v_sub_f32 v12, v12, v19')
E('v_mul_f32 v12, s%d, v12' % sLOG2E)
E('v_exp_f32 v12, v12')
E('v_mul_f32 v20, v16, v17')
for step in ('quad_perm:[1,0,3,2]', 'quad_perm:[2,3,0,1]', 'row_half_mirror', 'row_mirror'):
    E('s_nop 1')
    E('v_add_f32_dpp v20, v20, v20 %s%s' % (step, DPP))
E('s_cmp_eq_u32 s%d, 0' % sW)
E('s_cbranch_scc0 L_mlpub')
E('v_mov_b32 v16, v19')
E('v_mov_b32 v17, v20')
E('s_lshl_b32 s6, s5, 5')
E('s_lshl_b32 s7, s%d, 3' % sQT)
E('s_add_u32 s6, s6, s7')
E('s_add_u32 s6, s6, %d' % ML_B)
E('s_mov_b64 exec, 1')
E('buffer_store_dwordx2 v[16:17], v1, %s, s6 offen sc1' % srd(S_WS))
E('s_mov_b64 exec, -1')
L('L_mlpub')
for t in range(16):
    E('v_mul_f32 v%d, v%d, v12' % (Sreg(t), Sreg(t)))
for i in range(8):
    E('v_cvt_pk_bf16_f32 v%d, v%d, v%d' % (2 + i, Sreg(2 * i), Sreg(2 * i + 1)))
stamp(3)
C('V phase')
for p in range(8):
    wait_for('V%d' % (2 * p + 1))
    pair_gemv(Vreg(2 * p), Vreg(2 * p + 1), 2 + p, 10, 124, first=(p == 0))
acc8_rows_reduce(10)
E('ds_write_b64 v21, v[10:11] offset:%d' % L_QP)
E('s_waitcnt lgkmcnt(0)')
E('s_barrier')
stamp(4)
E('s_cmp_eq_u32 s%d, 0' % sW)
E('s_cbranch_scc0 L_t1')
C('wave 0: publish O partial')
wg_partial_sum(24, 2)
E('v_and_b32 v2, 31, v0')
E('v_lshlrev_b32 v2, 4, v2')
E('v_lshrrev_b32 v3, 5, v0')
E('v_lshl_add_u32 v2, v3, 3, v2')
E('s_lshl_b32 s6, s%d, 12' % sH)
E('s_lshl_b32 s7, s%d, 9' % sR)
E('s_add_u32 s6, s6, s7')
E('s_add_u32 s6, s6, %d' % O_B)
E('buffer_store_dwordx2 v[24:25], v2, %s, s6 offen sc1' % srd(S_WS))
stamp(5)
E('s_endpgm')

def counter_check(tag):
    E('s_waitcnt vmcnt(0)')
    L('L_cc%s' % tag)
    E('v_readfirstlane_b32 s6, v23')
    E('s_cmp_ge_u32 s6, 256')
    E('s_cbranch_scc1 L_ccd%s' % tag)
    spin_guard('L_ccd%s' % tag)
    E('buffer_load_dword v23, off, %s, 0 sc1' % srd(S_DBG))
    E('s_waitcnt vmcnt(0)')
    E('s_branch L_cc%s' % tag)
    L('L_ccd%s' % tag)

def sentinel_check(regs, tmp, loop_label, done_label):
    E('v_max3_u32 v%d, v%d, v%d, v%d' % (tmp, regs[0], regs[1], regs[2]))
    rest = regs[3:]
    while len(rest) >= 2:
        E('v_max3_u32 v%d, v%d, v%d, v%d' % (tmp, tmp, rest[0], rest[1])); rest = rest[2:]
    if rest:
        E('v_max_u32 v%d, v%d, v%d' % (tmp, tmp, rest[0]))
    E('v_cmp_eq_u32 vcc, -1, v%d' % tmp)
    E('s_cbranch_vccz %s' % done_label)
    spin_guard(done_label)
    E('s_branch %s' % loop_label)

L('L_t1')
E('s_cmp_lt_u32 s%d, 6' % sW)
E('s_cbranch_scc0 L_t2')
C('waves 1..5: y tile')
E('s_sub_u32 s15, s%d, 1' % sW)
counter_check('y')
E('v_lshrrev_b32 v2, 4, v0')
E('v_bfe_u32 v3, v0, 2, 2')
E('v_lshl_add_u32 v3, v2, 3, v3')
E('v_lshlrev_b32 v3, 5, v3')
E('v_and_b32 v4, 3, v0')
E('v_lshl_add_u32 v3, v4, 3, v3')
E('s_mul_i32 s6, s15, 5120')
E('v_add_u32 v3, s6, v3')
for s in range(4):
    for hf in range(2):
        E('ds_read_b64_tr_b16 %s, v3 offset:%d' % (vr(32 + 4 * s + 2 * hf, 2), L_WO + s * 1024 + hf * 128))
E('v_lshrrev_b32 v4, 5, v0')
E('v_and_b32 v5, 31, v0')
E('v_lshlrev_b32 v6, 11, v4')
E('v_lshl_add_u32 v6, v5, 4, v6')
E('v_lshlrev_b32 v7, 10, v4')
E('s_lshl_b32 s8, s%d, 12' % sH)
E('s_add_u32 s8, s8, %d' % O_B)
E('s_lshl_b32 s9, s%d, 5' % sH)
E('s_add_u32 s9, s9, %d' % ML_B)
L('L_ypoll')
for i in range(4):
    E('buffer_load_dwordx4 %s, v6, %s, s8 offen offset:%d sc1' % (vr(48 + 4 * i, 4), srd(S_WS), i * 512))
E('buffer_load_dwordx4 v[64:67], v7, %s, s9 offen sc1' % srd(S_WS))
E('buffer_load_dwordx4 v[68:71], v7, %s, s9 offen offset:16 sc1' % srd(S_WS))
E('s_waitcnt vmcnt(0)')
sentinel_check(list(range(48, 72)), 8, 'L_ypoll', 'L_ygo')
L('L_ygo')
stamp(6)
E('v_max3_f32 v8, v64, v66, v68')
E('v_max_f32 v8, v8, v70')
for i in range(4):
    E('v_sub_f32 v%d, v%d, v8' % (64 + 2 * i, 64 + 2 * i))
    E('v_mul_f32 v%d, s%d, v%d' % (64 + 2 * i, sLOG2E, 64 + 2 * i))
    E('v_exp_f32 v%d, v%d' % (64 + 2 * i, 64 + 2 * i))
E('s_nop 0')
E('v_mul_f32 v9, v64, v65')
for i in range(1, 4):
    E('v_fmac_f32 v9, v%d, v%d' % (64 + 2 * i, 65 + 2 * i))
E('v_rcp_f32 v9, v9')
for k in range(4):
    E('v_mul_f32 v%d, v64, v%d' % (48 + k, 48 + k))
for i in range(1, 4):
    for k in range(4):
        E('v_fmac_f32 v%d, v%d, v%d' % (48 + k, 64 + 2 * i, 48 + 4 * i + k))
for k in range(4):
    E('v_mul_f32 v%d, v9, v%d' % (48 + k, 48 + k))
E('v_cvt_pk_bf16_f32 v10, v48, v49')
E('v_cvt_pk_bf16_f32 v11, v50, v51')
E('v_lshlrev_b32 v12, 8, v4')
E('v_lshl_add_u32 v12, v5, 3, v12')
E('s_lshl_b32 s6, s15, 9')
E('v_add_u32 v12, s6, v12')
E('ds_write_b64 v12, v[10:11] offset:%d' % L_OBF)
E('v_and_b32 v13, 1, v0')
E('v_lshlrev_b32 v13, 8, v13')
E('v_lshl_add_u32 v13, v2, 4, v13')
E('v_add_u32 v13, s6, v13')
E('s_waitcnt lgkmcnt(0)')
for s in range(4):
    E('ds_read_b128 %s, v13 offset:%d' % (vr(72 + 4 * s, 4), L_OBF + 64 * s))
for s in range(4):
    E('s_waitcnt lgkmcnt(%d)' % (3 - s))
    E('v_mfma_f32_16x16x32_bf16 v[88:91], %s, %s, %s' % (vr(72 + 4 * s, 4), vr(32 + 4 * s, 4), '0' if s == 0 else 'v[88:91]'))
E('s_mul_i32 s6, s%d, 5' % sR)
E('s_add_u32 s6, s6, s15')
E('s_lshl_b32 s6, s6, 12')
E('s_lshl_b32 s7, s%d, 7' % sH)
E('s_add_u32 s6, s6, s7')
E('s_add_u32 s6, s6, %d' % Y_B)
E('v_lshlrev_b32 v14, 2, v0')
E('s_nop 7')
E('s_mov_b64 exec, 0xffff')
E('buffer_store_dword v88, v14, %s, s6 offen sc1' % srd(S_WS))
E('buffer_store_dword v89, v14, %s, s6 offen offset:64 sc1' % srd(S_WS))
stamp(7)
E('s_endpgm')

def two_val_xor16(a, b, t0, t1):
    E('v_mov_b32 v%d, v%d' % (t0, a))
    E('v_mov_b32 v%d, v%d' % (t1, b))
    E('s_nop 1')
    E('v_permlane16_swap_b32 v%d, v%d' % (a, t0))
    E('v_permlane16_swap_b32 v%d, v%d' % (b, t1))
    E('v_add_f32 v%d, v%d, v%d' % (a, a, t0))
    E('v_add_f32 v%d, v%d, v%d' % (b, b, t1))

L('L_t2')
E('s_cmp_eq_u32 s%d, 6' % sW)
E('s_cbranch_scc0 L_t3')
E('s_cmp_eq_u32 s%d, 2' % sROLE)
E('s_cbranch_scc0 L_t2b')
C('wave 6: h reducer')
E('v_bfe_u32 v2, v0, 2, 1')
E('v_mul_u32_u24 v2, 1280, v2')
E('v_and_b32 v3, 3, v0')
E('v_lshl_add_u32 v2, v3, 3, v2')
E('v_lshrrev_b32 v3, 5, v0')
E('v_lshl_add_u32 v2, v3, 2, v2')
E('s_lshl_b32 s8, s%d, 5' % sIDX)
E('buffer_load_dword v4, v2, %s, s8 offen' % srd(S_X))
counter_check('h')
E('s_lshl_b32 s9, s%d, 12' % sIDX)
E('s_add_u32 s9, s9, %d' % Y_B)
L('L_hpoll')
for i in range(4):
    E('buffer_load_dwordx4 %s, v1, %s, s9 offen offset:%d sc1' % (vr(32 + 4 * i, 4), srd(S_WS), i * 1024))
E('s_waitcnt vmcnt(0)')
sentinel_check(list(range(32, 48)), 8, 'L_hpoll', 'L_hgo')
L('L_hgo')
stamp(8)
for k in range(4):
    E('v_add_f32 v%d, v%d, v%d' % (32 + k, 32 + k, 36 + k))
    E('v_add_f32 v%d, v%d, v%d' % (40 + k, 40 + k, 44 + k))
for k in range(4):
    E('v_add_f32 v%d, v%d, v%d' % (32 + k, 32 + k, 40 + k))
E('s_nop 0')
for k in range(4):
    E('v_add_f32_dpp v%d, v%d, v%d row_ror:8%s' % (32 + k, 32 + k, 32 + k, DPP))
E('s_nop 0')
E('v_permlane32_swap_b32 v32, v34')
E('v_permlane32_swap_b32 v33, v35')
E('v_add_f32 v32, v32, v34')
E('v_add_f32 v33, v33, v35')
two_val_xor16(32, 33, 34, 35)
E('v_cvt_pk_bf16_f32 v34, v32, v33')
E('v_lshlrev_b32 v32, 16, v34')
E('v_and_b32 v33, 0xffff0000, v34')
E('v_lshlrev_b32 v5, 16, v4')
E('v_and_b32 v6, 0xffff0000, v4')
E('v_add_f32 v32, v32, v5')
E('v_add_f32 v33, v33, v6')
E('v_cvt_pk_bf16_f32 v34, v32, v33')
E('v_mov_b32 v35, 0x7fc07fc0')
E('v_cmp_eq_u32 vcc, -1, v34')
E('s_add_u32 s8, s8, %d' % H_B)
E('s_nop 0')
E('v_cndmask_b32 v34, v34, v35, vcc')
E('s_mov_b32 exec_lo, 0xff')
E('s_mov_b32 exec_hi, 0xff')
E('buffer_store_dword v34, v2, %s, s8 offen sc1' % srd(S_WS))
stamp(9)
E('s_endpgm')

L('L_t2b')
E('s_cmp_eq_u32 s%d, 3' % sROLE)
E('s_cbranch_scc0 L_end')
C('wave 6: final reducer')
E('s_cmp_ge_u32 s%d, 40' % sIDX)
E('s_cselect_b32 s6, 1, 0')
E('s_mul_i32 s7, s6, 40')
E('s_sub_u32 s7, s%d, s7' % sIDX)
E('s_mul_i32 s8, s6, 1280')
E('s_lshl_b32 s7, s7, 5')
E('s_add_u32 s8, s8, s7')
E('v_and_b32 v3, 3, v0')
E('v_lshlrev_b32 v2, 3, v3')
E('v_lshrrev_b32 v3, 5, v0')
E('v_lshl_add_u32 v2, v3, 2, v2')
E('s_mul_i32 s9, s%d, %d' % (sIDX, ZS))
E('s_add_u32 s9, s9, %d' % Z_B)
E('s_add_u32 s10, s9, 4096')
E('s_add_u32 s11, s8, %d' % H_B)
E('s_mov_b32 s%d, s38' % S_A)
E('s_mov_b32 s%d, s39' % (S_A + 1))
E('s_add_u32 s%d, s9, %d' % (S_A + 2, ZS))
E('s_mov_b32 s%d, 0x20000' % (S_A + 3))
counter_check('f')
L('L_fpoll')
for i in range(7):
    E('buffer_load_dwordx4 %s, v1, %s, s%d offen offset:%d sc1' % (vr(32 + 4 * i, 4), srd(S_A), 9 if i < 4 else 10, (i & 3) * 1024))
E('buffer_load_dword v4, v2, %s, s11 offen sc1' % srd(S_WS))
E('s_waitcnt vmcnt(0)')
sentinel_check(list(range(32, 60)) + [4], 8, 'L_fpoll', 'L_fgo')
L('L_fgo')
stamp(14)
for k in range(4):
    E('v_add_f32 v%d, v%d, v%d' % (32 + k, 32 + k, 36 + k))
    E('v_add_f32 v%d, v%d, v%d' % (40 + k, 40 + k, 44 + k))
    E('v_add_f32 v%d, v%d, v%d' % (48 + k, 48 + k, 52 + k))
for k in range(4):
    E('v_add_f32 v%d, v%d, v%d' % (32 + k, 32 + k, 40 + k))
    E('v_add_f32 v%d, v%d, v%d' % (48 + k, 48 + k, 56 + k))
for k in range(4):
    E('v_add_f32 v%d, v%d, v%d' % (32 + k, 32 + k, 48 + k))
E('s_nop 0')
for k in range(4):
    E('v_add_f32_dpp v%d, v%d, v%d row_ror:4%s' % (32 + k, 32 + k, 32 + k, DPP))
for k in range(4):
    E('v_add_f32_dpp v%d, v%d, v%d row_ror:8%s' % (32 + k, 32 + k, 32 + k, DPP))
E('s_nop 0')
E('v_permlane32_swap_b32 v32, v34')
E('v_permlane32_swap_b32 v33, v35')
E('v_add_f32 v32, v32, v34')
E('v_add_f32 v33, v33, v35')
two_val_xor16(32, 33, 34, 35)
E('v_cvt_pk_bf16_f32 v34, v32, v33')
E('v_lshlrev_b32 v32, 16, v34')
E('v_and_b32 v33, 0xffff0000, v34')
E('v_lshlrev_b32 v5, 16, v4')
E('v_and_b32 v6, 0xffff0000, v4')
E('v_add_f32 v32, v32, v5')
E('v_add_f32 v33, v33, v6')
E('v_cvt_pk_bf16_f32 v34, v32, v33')
E('s_mov_b32 exec_lo, 0xf')
E('s_mov_b32 exec_hi, 0xf')
E('buffer_store_dword v34, v2, %s, s8 offen' % srd(S_OUT))
stamp(15)
E('s_endpgm')

L('L_t3')
E('s_cmp_lt_u32 s%d, 8' % sW)
E('s_cbranch_scc1 L_end')
E('s_cmp_eq_u32 s%d, 1' % sROLE)
E('s_cbranch_scc0 L_end')
C('FFN team: waves 8..15')
E('s_sub_u32 s15, s%d, 8' % sW)
counter_check('n')
E('v_lshrrev_b32 v2, 4, v0')
E('v_bfe_u32 v3, v0, 2, 2')
E('v_and_b32 v4, 3, v0')
E('v_lshl_add_u32 v5, v2, 3, v3')
E('v_lshlrev_b32 v5, 5, v5')
E('v_lshl_add_u32 v5, v4, 3, v5')
E('s_mul_i32 s6, s15, 5120')
E('v_add_u32 v5, s6, v5')
for s in range(5):
    for hf in range(2):
        E('ds_read_b64_tr_b16 %s, v5 offset:%d' % (vr(32 + 4 * s + 2 * hf, 2), L_GU + s * 1024 + hf * 128))
E('v_lshl_add_u32 v6, v2, 2, v3')
E('v_lshlrev_b32 v6, 5, v6')
E('v_lshl_add_u32 v6, v4, 3, v6')
E('s_mul_i32 s6, s15, 3072')
E('s_add_u32 s6, s6, %d' % L_DN)
E('v_add_u32 v6, s6, v6')
for t in range(5):
    E('ds_read_b64_tr_b16 %s, v6 offset:%d' % (vr(52 + 2 * t, 2), t * 512))
E('s_cmp_lt_u32 s15, 2')
E('s_cbranch_scc0 L_nb5')
E('v_mul_u32_u24 v7, 20, v0')
E('s_mul_i32 s8, s15, 1280')
E('s_add_u32 s9, s8, %d' % H_B)
L('L_npoll')
E('buffer_load_dwordx4 v[64:67], v7, %s, s9 offen sc1' % srd(S_WS))
E('buffer_load_dword v68, v7, %s, s9 offen offset:16 sc1' % srd(S_WS))
E('s_waitcnt vmcnt(0)')
sentinel_check(list(range(64, 69)), 8, 'L_npoll', 'L_ngo')
L('L_ngo')
stamp(10)
layernorm(64, 70, 80)
E('v_add_u32 v7, s8, v7')
for i in range(5):
    E('ds_write_b32 v7, v%d offset:%d' % (64 + i, L_L2 + 4 * i))
L('L_nb5')
E('s_waitcnt lgkmcnt(0)')
E('s_barrier')
E('v_and_b32 v7, 1, v0')
E('v_mul_u32_u24 v8, 1280, v7')
E('v_lshl_add_u32 v8, v2, 4, v8')
E('s_lshr_b32 s6, s15, 1')
E('s_mul_i32 s7, s6, 320')
E('v_add_u32 v8, s7, v8')
for s in range(5):
    E('ds_read_b128 %s, v8 offset:%d' % (vr(64 + 4 * s, 4), L_L2 + 64 * s))
for s in range(5):
    E('s_waitcnt lgkmcnt(%d)' % (4 - s))
    E('v_mfma_f32_16x16x32_bf16 v[88:91], %s, %s, %s' % (vr(64 + 4 * s, 4), vr(32 + 4 * s, 4), '0' if s == 0 else 'v[88:91]'))
E('s_and_b32 s7, s15, 1')
E('s_lshl_b32 s7, s7, 2')
E('s_add_u32 s7, s7, s6')
E('s_lshl_b32 s7, s7, 7')
E('v_lshlrev_b32 v9, 2, v0')
E('v_add_u32 v9, s7, v9')
E('s_nop 7')
E('s_mov_b64 exec, 0xffff')
E('ds_write_b32 v9, v88 offset:%d' % L_P)
E('ds_write_b32 v9, v89 offset:%d' % (L_P + 64))
E('s_mov_b64 exec, -1')
E('s_waitcnt lgkmcnt(0)')
E('s_barrier')
stamp(11)
E('v_lshlrev_b32 v9, 6, v7')
E('v_lshl_add_u32 v9, v2, 4, v9')
for i in range(8):
    E('ds_read_b128 %s, v9 offset:%d' % (vr(64 + 4 * i, 4), L_P + i * 128))
E('s_waitcnt lgkmcnt(0)')
for m in range(2):
    base = 64 + 16 * m
    for k in range(4):
        E('v_add_f32 v%d, v%d, v%d' % (base + k, base + k, base + 4 + k))
        E('v_add_f32 v%d, v%d, v%d' % (base + 8 + k, base + 8 + k, base + 12 + k))
    for k in range(4):
        E('v_add_f32 v%d, v%d, v%d' % (base + k, base + k, base + 8 + k))
    for k in (0, 2):
        E('v_cvt_pk_bf16_f32 v10, v%d, v%d' % (base + k, base + k + 1))
        E('v_lshlrev_b32 v%d, 16, v10' % (base + k))
        E('v_and_b32 v%d, 0xffff0000, v10' % (base + k + 1))
for k in range(4):
    E('v_mul_f32 v%d, v%d, v%d' % (64 + k, 64 + k, 80 + k))
E('v_cvt_pk_bf16_f32 v10, v64, v65')
E('v_cvt_pk_bf16_f32 v11, v66, v67')
E('s_nop 1')
for t in range(5):
    E('v_mfma_f32_16x16x16_bf16 %s, v[10:11], %s, 0' % (vr(96 + 4 * t, 4), vr(52 + 2 * t, 2)))
E('s_mul_i32 s6, s15, %d' % (5 * ZS))
E('s_lshl_b32 s7, s%d, 6' % sIDX)
E('s_add_u32 s6, s6, s7')
E('s_add_u32 s6, s6, %d' % Z_B)
E('s_add_u32 s7, s6, %d' % (40 * ZS))
E('v_lshlrev_b32 v14, 2, v0')
E('s_nop 4')
E('s_mov_b64 exec, 0xffff')
for t in range(5):
    E('buffer_store_dword v%d, v14, %s, s6 offen sc1' % (96 + 4 * t, srd(S_WS)))
    E('buffer_store_dword v%d, v14, %s, s7 offen sc1' % (97 + 4 * t, srd(S_WS)))
    if t < 4:
        E('s_add_u32 s6, s6, %d' % ZS)
        E('s_add_u32 s7, s7, %d' % ZS)
stamp(12)
L('L_end')
E('s_endpgm')
out.append('.section .rodata,"a"')
out.append('.p2align 6')
out.append('.amdhsa_kernel %s' % NAME)
out.append('  .amdhsa_next_free_vgpr 128')
out.append('  .amdhsa_next_free_sgpr 102')
out.append('  .amdhsa_accum_offset 128')
out.append('  .amdhsa_group_segment_fixed_size 0')
out.append('  .amdhsa_kernarg_size 96')
out.append('  .amdhsa_user_sgpr_count 2')
out.append('  .amdhsa_user_sgpr_kernarg_segment_ptr 1')
out.append('  .amdhsa_system_sgpr_workgroup_id_x 1')
out.append('  .amdhsa_float_denorm_mode_32 3')
out.append('.end_amdhsa_kernel')
print('\n'.join(out))
```

```python
import sys

NAME = 'sequential_preLN__mha_block_cached__glu_gated_bilinear__decode_kernel'
OPT = dict(a.split('=') for a in sys.argv[1:] if '=' in a)
TS = int(OPT.get('ts', 0))
def flag(k, d):
    v = OPT.get(k, d)
    return '' if v == '-' else v.replace('+', ' ')
KVFLAG = flag('kv', 'nt')
WFLAG = flag('w', 'nt')
WQFLAG = flag('wq', '-')
D = int(OPT.get('d', 6))
D1 = int(OPT.get('d1', 8))
DMAPOS = OPT.get('dma', 'end')

out = []
def E(s): out.append('  ' + s)
def L(s): out.append(s + ':')
def C(s): out.append('  ; ' + s)

ML_B = 0x0
O_B = 0x10000
Y_B = 0x40000
H_B = 0x80000
Z_B = 0x100000
ZS = 108 * 64
TS_B = 0x800000
WS_BYTES = 0x10000000
L_QP = 0x0
L_QBF = 0x2000
L_ML = 0x2100
L_OBF = 0x2200
L_L2 = 0x2C00
L_P = 0x3600
L_DUMMY = 0x3A00
L_WO = 0x4000
L_F = 0xC000
LDS_BYTES = 0x14000
G_B = 0x300000

S_K, S_V, S_WQ, S_WS, S_X, S_A, S_B, S_DBG, S_OUT = 40, 44, 48, 52, 56, 60, 64, 68, 72
S_C = 48
sTEAM, sTIDX, sKAP = 89, 90, 97
sW, sH, sBb, sQT, sR, sKV, sROLE, sIDX, sMU, sXCD = 76, 77, 78, 79, 80, 81, 82, 83, 84, 85
sSELLO, sSELHI, sSPIN, sT2, sT3 = 86, 87, 88, 91, 92
sSCALE, sLOG2E, sBH, sWQO = 93, 94, 95, 96
sTS = 98

def srd(n): return 's[%d:%d]' % (n, n + 3)
def vr(a, n): return 'v[%d:%d]' % (a, a + n - 1)
DPP = ' row_mask:0xf bank_mask:0xf'
BFLY = ('quad_perm:[1,0,3,2]', 'quad_perm:[2,3,0,1]', 'row_half_mirror', 'row_mirror')

def stamp(idx, va=18, vd=22):
    if not TS: return
    E('s_memrealtime s[%d:%d]' % (sTS, sTS + 1))
    E('s_waitcnt lgkmcnt(0)')
    E('v_mov_b32 v%d, s%d' % (vd, sTS))
    E('s_lshl_b32 s%d, s2, 11' % sT3)
    E('s_lshl_b32 s%d, s%d, 7' % (sT2, sW))
    E('s_add_u32 s%d, s%d, s%d' % (sT3, sT3, sT2))
    E('s_add_u32 s%d, s%d, %d' % (sT3, sT3, TS_B + idx * 4))
    E('v_mov_b32 v%d, s%d' % (va, sT3))
    E('buffer_store_dword v%d, v%d, %s, 0 offen' % (vd, va, srd(S_WS)))

def row_allreduce(v, op):
    for step in BFLY:
        E('s_nop 1')
        E('v_%s_f32_dpp v%d, v%d, v%d %s%s' % (op, v, v, v, step, DPP))

def rows_allreduce(v, tmp, op):
    ins = 'v_%s_f32' % op
    E('v_mov_b32 v%d, v%d' % (tmp, v))
    E('s_nop 1')
    E('v_permlane32_swap_b32 v%d, v%d' % (v, tmp))
    E('%s v%d, v%d, v%d' % (ins, v, v, tmp))
    E('v_mov_b32 v%d, v%d' % (tmp, v))
    E('s_nop 1')
    E('v_permlane16_swap_b32 v%d, v%d' % (v, tmp))
    E('%s v%d, v%d, v%d' % (ins, v, v, tmp))

def wave_allreduce(v, tmp, op):
    row_allreduce(v, op)
    rows_allreduce(v, tmp, op)

def rne_bf16(v):
    E('v_cvt_pk_bf16_f32 v%d, v%d, v%d' % (v, v, v))
    E('v_and_b32 v%d, 0xffff0000, v%d' % (v, v))

def unpack(lo, hi, src):
    E('v_lshlrev_b32 v%d, 16, v%d' % (lo, src))
    E('v_and_b32 v%d, 0xffff0000, v%d' % (hi, src))

def layernorm(X, F, T):
    for i in range(5): unpack(F + 2 * i, F + 2 * i + 1, X + i)
    E('v_add_f32 v%d, v%d, v%d' % (T, F, F + 1))
    E('v_add_f32 v%d, v%d, v%d' % (T + 1, F + 2, F + 3))
    for i in (4, 6, 8):
        E('v_add_f32 v%d, v%d, v%d' % (T, T, F + i))
        E('v_add_f32 v%d, v%d, v%d' % (T + 1, T + 1, F + i + 1))
    E('v_add_f32 v%d, v%d, v%d' % (T, T, T + 1))
    wave_allreduce(T, T + 1, 'add')
    E('v_mul_f32 v%d, 0x3acccccd, v%d' % (T, T))
    E('v_sub_f32 v%d, v%d, v%d' % (T + 2, F, T))
    E('v_mul_f32 v%d, v%d, v%d' % (T + 1, T + 2, T + 2))
    for i in range(1, 10):
        E('v_sub_f32 v%d, v%d, v%d' % (T + 2, F + i, T))
        E('v_fmac_f32 v%d, v%d, v%d' % (T + 1, T + 2, T + 2))
    wave_allreduce(T + 1, T + 2, 'add')
    E('v_mul_f32 v%d, 0x3acccccd, v%d' % (T + 1, T + 1))
    rne_bf16(T)
    rne_bf16(T + 1)
    E('v_add_f32 v%d, 0x3727c5ac, v%d' % (T + 1, T + 1))
    rne_bf16(T + 1)
    E('v_sqrt_f32 v%d, v%d' % (T + 1, T + 1))
    E('s_nop 0')
    rne_bf16(T + 1)
    E('v_rcp_f32 v%d, v%d' % (T + 2, T + 1))
    for i in range(5):
        a, b = F + 2 * i, F + 2 * i + 1
        E('v_sub_f32 v%d, v%d, v%d' % (a, a, T))
        E('v_sub_f32 v%d, v%d, v%d' % (b, b, T))
        E('v_cvt_pk_bf16_f32 v%d, v%d, v%d' % (X + i, a, b))
        unpack(a, b, X + i)
        for r in (a, b):
            E('v_mul_f32 v%d, v%d, v%d' % (T + 3, r, T + 2))
            E('v_fma_f32 v%d, -v%d, v%d, v%d' % (r, T + 3, T + 1, r))
            E('v_fma_f32 v%d, v%d, v%d, v%d' % (r, r, T + 2, T + 3))
        E('v_cvt_pk_bf16_f32 v%d, v%d, v%d' % (X + i, a, b))

def pair_gemv(Wa, Wb, Lp, ACC, T, first=False):
    for d in range(4):
        t0, t1 = T + (2 * d) % 4, T + (2 * d + 1) % 4
        E('v_perm_b32 v%d, v%d, v%d, s%d' % (t0, Wb + d, Wa + d, sSELLO))
        E('v_perm_b32 v%d, v%d, v%d, s%d' % (t1, Wb + d, Wa + d, sSELHI))
        if first:
            E('v_dot2_f32_bf16 v%d, v%d, v%d, 0' % (ACC + 2 * d, t0, Lp))
            E('v_dot2_f32_bf16 v%d, v%d, v%d, 0' % (ACC + 2 * d + 1, t1, Lp))
        else:
            E('v_dot2c_f32_bf16 v%d, v%d, v%d' % (ACC + 2 * d, t0, Lp))
            E('v_dot2c_f32_bf16 v%d, v%d, v%d' % (ACC + 2 * d + 1, t1, Lp))

def acc8_rows_reduce(A):
    E('s_nop 2')
    for i in range(4): E('v_permlane32_swap_b32 v%d, v%d' % (A + i, A + 4 + i))
    for i in range(4): E('v_add_f32 v%d, v%d, v%d' % (A + i, A + i, A + 4 + i))
    E('s_nop 0')
    E('v_permlane16_swap_b32 v%d, v%d' % (A, A + 2))
    E('v_permlane16_swap_b32 v%d, v%d' % (A + 1, A + 3))
    E('v_add_f32 v%d, v%d, v%d' % (A, A, A + 2))
    E('v_add_f32 v%d, v%d, v%d' % (A + 1, A + 1, A + 3))

def half_combine(R):
    E('s_nop 1')
    E('v_permlane32_swap_b32 v%d, v%d' % (R, R + 2))
    E('v_permlane32_swap_b32 v%d, v%d' % (R + 1, R + 3))
    E('v_add_f32 v%d, v%d, v%d' % (R, R, R + 2))
    E('v_add_f32 v%d, v%d, v%d' % (R + 1, R + 1, R + 3))

def spin_guard(label_bail):
    E('s_add_u32 s%d, s%d, 1' % (sSPIN, sSPIN))
    E('s_cmp_gt_u32 s%d, 0x200000' % sSPIN)
    E('s_cbranch_scc1 %s' % label_bail)

def build_srd(n, ptr, nbytes):
    E('s_mov_b32 s%d, s%d' % (n, ptr))
    E('s_mov_b32 s%d, s%d' % (n + 1, ptr + 1))
    E('s_mov_b32 s%d, 0x%x' % (n + 2, nbytes))
    E('s_mov_b32 s%d, 0x20000' % (n + 3))

out.append('; @launch grid=(256,1,1) block=(1024,1,1) lds=%d' % LDS_BYTES)
out.append('.amdgcn_target "amdgcn-amd-amdhsa--gfx950"')
out.append('.text')
out.append('.globl %s' % NAME)
out.append('.p2align 8')
out.append('.type %s,@function' % NAME)
L(NAME)
E('s_cmp_ge_u32 s2, 256')
E('s_cbranch_scc1 L_end')
E('s_load_dwordx16 s[16:31], s[0:1], 0')
E('s_load_dwordx8 s[32:39], s[0:1], 64')
E('v_lshrrev_b32 v3, 6, v0')
E('v_and_b32 v0, 63, v0')
E('v_readfirstlane_b32 s%d, v3' % sW)
E('v_lshlrev_b32 v1, 4, v0')
E('s_lshr_b32 s%d, s2, 3' % sH)
E('s_and_b32 s%d, s2, 7' % sR)
E('s_lshr_b32 s%d, s%d, 2' % (sBb, sR))
E('s_and_b32 s%d, s%d, 3' % (sQT, sR))
E('s_lshl_b32 s%d, s%d, 5' % (sBH, sBb))
E('s_add_u32 s%d, s%d, s%d' % (sBH, sBH, sH))
E('s_lshl_b32 s%d, s%d, 20' % (sKV, sBH))
E('s_lshl_b32 s6, s%d, 18' % sQT)
E('s_add_u32 s%d, s%d, s6' % (sKV, sKV))
E('s_lshl_b32 s6, s%d, 14' % sW)
E('s_add_u32 s%d, s%d, s6' % (sKV, sKV))
E('s_mov_b32 s%d, 0' % sTEAM)
E('s_mov_b32 s%d, 0' % sKAP)
E('s_mul_i32 s6, s2, 52429')
E('s_lshr_b32 s%d, s6, 18' % sTIDX)
E('s_mul_i32 s6, s%d, 5' % sTIDX)
E('s_sub_u32 s%d, s2, s6' % sKAP)
E('s_cmp_lt_u32 s2, 135')
E('s_cselect_b32 s%d, 1, 0' % sTEAM)
E('s_cbranch_scc1 L_role1')
E('s_sub_u32 s%d, s2, 135' % sTIDX)
E('s_cmp_lt_u32 s2, 243')
E('s_cselect_b32 s%d, 2, 0' % sTEAM)
L('L_role1')
E('s_mov_b32 s%d, 0' % sROLE)
E('s_sub_u32 s%d, s2, 136' % sIDX)
E('s_cmp_lt_u32 s2, 136')
E('s_cbranch_scc1 L_roledone')
E('s_mov_b32 s%d, 3' % sROLE)
E('s_cmp_lt_u32 s2, 216')
E('s_cbranch_scc1 L_roledone')
E('s_mov_b32 s%d, 2' % sROLE)
E('s_sub_u32 s%d, s2, 216' % sIDX)
L('L_roledone')
E('s_mov_b32 s%d, 0x05040100' % sSELLO)
E('s_mov_b32 s%d, 0x07060302' % sSELHI)
E('s_mov_b32 s%d, 0x3db504f3' % sSCALE)
E('s_mov_b32 s%d, 0x3fb8aa3b' % sLOG2E)
E('s_mov_b32 s%d, 0' % sSPIN)
E('v_lshrrev_b32 v4, 4, v0')
E('v_and_b32 v5, 15, v0')
E('s_mov_b32 s6, %d' % (160 * 8192))
E('v_mul_lo_u32 v23, v4, s6')
E('v_lshl_add_u32 v23, v5, 4, v23')
E('v_mul_u32_u24 v3, 20, v0')
E('s_mul_i32 s6, s%d, 1280' % sBb)
E('v_add_u32 v3, s6, v3')
E('s_mul_i32 s%d, s%d, %d' % (sWQO, sW, 10 * 8192))
E('s_lshl_b32 s6, s%d, 8' % sH)
E('s_add_u32 s%d, s%d, s6' % (sWQO, sWQO))
for r in (12, 13, 14, 15): E('v_mov_b32 v%d, -1' % r)
E('s_waitcnt lgkmcnt(0)')
build_srd(S_X, 16, 2560)
build_srd(S_K, 18, 0x4000000)
build_srd(S_V, 20, 0x4000000)
build_srd(S_WQ, 22, 640 * 8192)
build_srd(S_WS, 38, WS_BYTES)
build_srd(S_DBG, 36, 256)
build_srd(S_OUT, 34, 2560)
stamp(0)

WQ0, K0 = 24, 64
q = []
def issue(name, text):
    q.append(name); E(text)
def wait_for(name):
    if name not in q: return
    i = q.index(name)
    E('s_waitcnt vmcnt(%d)' % (len(q) - 1 - i))
    del q[:i + 1]
def throttle(d):
    if len(q) >= d: wait_for(q[len(q) - d])
def kv_load(which, t, reg):
    E('s_add_u32 s6, s%d, %d' % (sKV, (t >> 2) * 4096))
    issue('%s%d' % (which, t), 'buffer_load_dwordx4 %s, v1, %s, s6 offen offset:%d %s' % (vr(reg, 4), srd(S_K if which == 'K' else S_V), (t & 3) * 1024, KVFLAG))
def wq_load(t):
    if t: E('s_add_u32 s%d, s%d, 8192' % (sWQO, sWQO))
    issue('WQ%d' % t, 'buffer_load_dwordx4 %s, v23, %s, s%d offen %s' % (vr(WQ0 + 4 * t, 4), srd(S_WQ), sWQO, WQFLAG))
def Sreg(t): return 6 + t if t < 6 else K0 + 4 * t
def Vreg(t): return WQ0 + 4 * t if t < 10 else K0 + 4 * (t - 10)

def dma_block():
    C('tail weight DMA: 2 wo slots + 2 ffn slots per wave')
    E('s_mov_b32 s%d, s24' % S_A)
    E('s_mov_b32 s%d, s25' % (S_A + 1))
    E('s_mul_i32 s10, s%d, %d' % (sH, 128 * 1280))
    E('s_add_u32 s%d, s10, %d' % (S_A + 2, 128 * 1280))
    E('s_mov_b32 s%d, 0x20000' % (S_A + 3))
    E('s_mul_i32 s7, s%d, 160' % sR)
    E('s_add_u32 s10, s10, s7')
    E('s_lshl_b32 s6, s%d, 6' % sW)
    E('v_add_u32 v12, s6, v0')
    E('v_add_u32 v13, 1024, v12')
    E('s_movk_i32 s7, 6554')
    for c, d in ((12, 14), (13, 15)):
        E('v_mul_u32_u24 v16, s7, v%d' % c)
        E('v_lshrrev_b32 v16, 16, v16')
        E('v_mul_u32_u24 v17, 10, v16')
        E('v_sub_u32 v17, v%d, v17' % c)
        E('v_mul_u32_u24 v%d, 1280, v16' % d)
        E('v_lshl_add_u32 v%d, v17, 4, v%d' % (d, d))
    E('s_lshl_b32 s8, s%d, 10' % sW)
    E('s_add_u32 s9, s8, %d' % L_WO)
    E('s_mov_b32 m0, s9')
    E('s_add_u32 s9, s9, 16384')
    throttle(D)
    issue('W0', 'buffer_load_dwordx4 v14, %s, s10 offen %s lds' % (srd(S_A), WFLAG))
    E('s_mov_b32 m0, s9')
    build_srd(S_B, 28, 0)
    build_srd(S_C, 30, 0)
    throttle(D)
    issue('W1', 'buffer_load_dwordx4 v15, %s, s10 offen %s lds' % (srd(S_A), WFLAG))
    E('s_mov_b32 s10, 0')
    E('s_mov_b32 s11, 0')
    E('v_mov_b32 v16, v1')
    E('s_cmp_eq_u32 s%d, 1' % sTEAM)
    E('s_cbranch_scc0 L_dma2')
    E('s_mov_b32 s%d, %d' % (S_B + 2, 640 * 3456))
    E('s_mov_b32 s%d, %d' % (S_C + 2, 640 * 3456))
    E('v_lshrrev_b32 v16, 3, v0')
    E('v_mul_u32_u24 v16, 3456, v16')
    E('v_and_b32 v17, 7, v0')
    E('v_lshl_add_u32 v16, v17, 4, v16')
    E('s_lshl_b32 s6, s%d, 7' % sKAP)
    E('s_lshl_b32 s7, s%d, 3' % sW)
    E('s_add_u32 s6, s6, s7')
    E('s_mul_i32 s10, s6, 3456')
    E('s_lshl_b32 s7, s%d, 7' % sTIDX)
    E('s_add_u32 s10, s10, s7')
    E('s_mov_b32 s11, s10')
    E('s_branch L_dma3')
    L('L_dma2')
    E('s_cmp_eq_u32 s%d, 2' % sTEAM)
    E('s_cbranch_scc0 L_dma3')
    E('s_mov_b32 s%d, s32' % S_B)
    E('s_mov_b32 s%d, s33' % (S_B + 1))
    E('s_mov_b32 s%d, s32' % S_C)
    E('s_mov_b32 s%d, s33' % (S_C + 1))
    E('s_mul_i32 s10, s%d, 20480' % sTIDX)
    E('s_add_u32 s%d, s10, 20480' % (S_B + 2))
    E('s_add_u32 s%d, s10, 20480' % (S_C + 2))
    E('s_add_u32 s10, s10, s8')
    E('s_add_u32 s11, s10, 16384')
    L('L_dma3')
    E('s_add_u32 s9, s8, %d' % L_F)
    E('s_mov_b32 m0, s9')
    E('s_add_u32 s9, s9, 16384')
    throttle(D)
    issue('F0', 'buffer_load_dwordx4 v16, %s, s10 offen %s lds' % (srd(S_B), WFLAG))
    E('s_mov_b32 m0, s9')
    E('s_nop 0')
    throttle(D)
    issue('F1', 'buffer_load_dwordx4 v16, %s, s11 offen %s lds' % (srd(S_C), WFLAG))

QP_B = 0x200000
E('v_and_b32 v19, 15, v0')
E('v_lshlrev_b32 v19, 5, v19')
E('v_lshrrev_b32 v20, 4, v0')
E('v_lshl_add_u32 v20, v20, 3, v19')
E('s_lshl_b32 s6, s%d, 9' % sW)
E('v_add_u32 v21, s6, v20')
E('s_cmp_eq_u32 s%d, 0' % sW)
E('s_cbranch_scc0 L_norm0')
C('service wave: nonce, q partial over 80 wq rows, both b')
E('s_memrealtime s[8:9]')
E('v_mul_u32_u24 v3, 20, v0')
E('buffer_load_dwordx4 v[4:7], v3, %s, 0 offen' % srd(S_X))
E('buffer_load_dword v8, v3, %s, 0 offen offset:16' % srd(S_X))
E('buffer_load_dwordx4 v[24:27], v3, %s, 0 offen offset:1280' % srd(S_X))
E('buffer_load_dword v28, v3, %s, 0 offen offset:1296' % srd(S_X))
E('v_lshrrev_b32 v9, 4, v0')
E('v_and_b32 v10, 15, v0')
E('s_mov_b32 s6, %d' % (20 * 8192))
E('v_mul_lo_u32 v2, v9, s6')
E('v_lshl_add_u32 v2, v10, 4, v2')
E('s_mul_i32 s7, s%d, %d' % (sR, 80 * 8192))
E('s_lshl_b32 s6, s%d, 8' % sH)
E('s_add_u32 s7, s7, s6')
for t in range(20):
    if t: E('s_add_u32 s7, s7, 8192')
    E('buffer_load_dwordx4 %s, v2, %s, s7 offen %s' % (vr(48 + 4 * t, 4), srd(S_WQ), WQFLAG))
E('s_waitcnt lgkmcnt(0)')
E('s_or_b32 s9, s9, 0x80000000')
E('v_mov_b32 v44, s8')
E('v_mov_b32 v45, s9')
E('v_mov_b32 v46, 0')
E('v_mov_b32 v47, 0')
E('s_mov_b64 exec, 1')
E('buffer_atomic_cmpswap_x2 v[44:47], off, %s, 0 sc0 sc1' % srd(S_DBG))
C('sentinel resets for every slot this WG will write (data v[12:15] = -1)')
E('s_lshl_b32 s6, s%d, 5' % sBH)
E('s_lshl_b32 s7, s%d, 3' % sQT)
E('s_add_u32 s6, s6, s7')
E('s_add_u32 s6, s6, %d' % ML_B)
E('buffer_store_dwordx2 v[12:13], v1, %s, s6 offen sc1' % srd(S_WS))
E('s_lshl_b32 s6, s%d, 12' % sH)
E('s_lshl_b32 s7, s%d, 9' % sR)
E('s_add_u32 s6, s6, s7')
E('s_add_u32 s6, s6, %d' % O_B)
E('s_mov_b32 exec_lo, -1')
E('buffer_store_dwordx4 v[12:15], v1, %s, s6 offen sc1' % srd(S_WS))
E('s_mov_b64 exec, -1')
E('v_lshrrev_b32 v9, 3, v0')
E('v_lshlrev_b32 v9, 12, v9')
E('v_and_b32 v10, 7, v0')
E('v_lshl_add_u32 v9, v10, 4, v9')
E('s_mul_i32 s6, s%d, %d' % (sR, 5 * 4096))
E('s_lshl_b32 s7, s%d, 7' % sH)
E('s_add_u32 s6, s6, s7')
E('s_add_u32 s6, s6, %d' % Y_B)
E('s_mov_b32 exec_hi, 0xff')
E('buffer_store_dwordx4 v[12:15], v9, %s, s6 offen sc1' % srd(S_WS))
E('s_mov_b64 exec, -1')
E('s_cmp_eq_u32 s%d, 2' % sROLE)
E('s_cbranch_scc0 L_rs3')
E('v_bfe_u32 v9, v0, 1, 1')
E('v_mul_u32_u24 v9, 1280, v9')
E('v_and_b32 v10, 1, v0')
E('v_lshl_add_u32 v9, v10, 4, v9')
E('v_lshrrev_b32 v10, 2, v0')
E('v_lshl_add_u32 v9, v10, 12, v9')
E('s_lshl_b32 s6, s%d, 5' % sIDX)
E('s_add_u32 s6, s6, %d' % H_B)
E('s_mov_b32 exec_hi, 0')
E('buffer_store_dwordx4 v[12:15], v9, %s, s6 offen sc1' % srd(S_WS))
E('s_mov_b64 exec, -1')
L('L_rs3')
E('s_cmp_eq_u32 s%d, 1' % sTEAM)
E('s_cbranch_scc0 L_rs4')
E('v_lshrrev_b32 v9, 4, v0')
E('v_mul_u32_u24 v9, 1280, v9')
E('v_and_b32 v10, 15, v0')
E('v_lshl_add_u32 v9, v10, 4, v9')
E('s_mul_i32 s6, s%d, 5120' % sTIDX)
E('s_lshl_b32 s7, s%d, 8' % sKAP)
E('s_add_u32 s6, s6, s7')
E('s_add_u32 s6, s6, %d' % G_B)
E('buffer_store_dwordx4 v[12:15], v9, %s, s6 offen sc1' % srd(S_WS))
L('L_rs4')
E('s_cmp_eq_u32 s%d, 2' % sTEAM)
E('s_cbranch_scc0 L_rsdone')
E('v_lshrrev_b32 v9, 2, v0')
E('v_mul_u32_u24 v9, %d, v9' % ZS)
E('v_and_b32 v10, 3, v0')
E('v_lshl_add_u32 v9, v10, 4, v9')
E('s_lshl_b32 s6, s%d, 6' % sTIDX)
E('s_add_u32 s6, s6, %d' % Z_B)
for i in range(5):
    if i: E('s_add_u32 s6, s6, %d' % (16 * ZS))
    E('buffer_store_dwordx4 v[12:15], v9, %s, s6 offen sc1' % srd(S_WS))
L('L_rsdone')
stamp(16)
E('s_waitcnt vmcnt(24)')
stamp(17)
layernorm(4, 9, 30)
layernorm(24, 9, 30)
E('v_lshrrev_b32 v9, 4, v0')
E('v_lshlrev_b32 v9, 3, v9')
E('s_lshl_b32 s6, s%d, 5' % sR)
E('v_add_u32 v9, s6, v9')
E('v_add_u32 v10, 4, v9')
LP = [list(range(30, 40)), [12, 13, 14, 15, 16, 17, 29, 19, 2, 3]]
for bb, X in ((0, 4), (1, 24)):
    for i in range(5):
        E('ds_bpermute_b32 v%d, v9, v%d' % (LP[bb][i], X + i))
        E('ds_bpermute_b32 v%d, v10, v%d' % (LP[bb][5 + i], X + i))
E('s_waitcnt lgkmcnt(0)')
stamp(18)
E('s_waitcnt vmcnt(4)')
ACC1 = [40, 41, 42, 43, 24, 25, 26, 27]
ACC0 = [4, 5, 6, 7, 8, 9, 10, 11]
TT = [18, 22, 23, 28]
for p in range(10):
    Wa, Wb = 48 + 8 * p, 52 + 8 * p
    for d in range(4):
        t0, t1 = TT[(2 * d) % 4], TT[(2 * d + 1) % 4]
        E('v_perm_b32 v%d, v%d, v%d, s%d' % (t0, Wb + d, Wa + d, sSELLO))
        E('v_perm_b32 v%d, v%d, v%d, s%d' % (t1, Wb + d, Wa + d, sSELHI))
        for bb, ACC in ((0, ACC0), (1, ACC1)):
            if p == 0:
                E('v_dot2_f32_bf16 v%d, v%d, v%d, 0' % (ACC[2 * d], t0, LP[bb][p]))
                E('v_dot2_f32_bf16 v%d, v%d, v%d, 0' % (ACC[2 * d + 1], t1, LP[bb][p]))
            else:
                E('v_dot2c_f32_bf16 v%d, v%d, v%d' % (ACC[2 * d], t0, LP[bb][p]))
                E('v_dot2c_f32_bf16 v%d, v%d, v%d' % (ACC[2 * d + 1], t1, LP[bb][p]))
E('s_nop 2')
for i in range(4): E('v_mov_b32 v%d, v%d' % (36 + i, 24 + i))
for i in range(4): E('v_mov_b32 v%d, v%d' % (32 + i, 40 + i))
acc8_rows_reduce(4)
acc8_rows_reduce(32)
E('s_waitcnt vmcnt(0)')
E('v_readfirstlane_b32 s10, v44')
E('v_readfirstlane_b32 s11, v45')
E('s_nop 3')
E('s_cmp_eq_u64 s[10:11], 0')
E('s_cselect_b32 s10, s8, s10')
E('s_cselect_b32 s11, s9, s11')
E('v_mov_b32 v6, s10')
E('v_mov_b32 v7, s11')
E('v_mov_b32 v34, s10')
E('v_mov_b32 v35, s11')
E('v_lshlrev_b32 v2, 1, v20')
E('s_lshl_b32 s9, s%d, 14' % sH)
E('s_lshl_b32 s8, s%d, 11' % sR)
E('s_add_u32 s8, s9, s8')
E('s_add_u32 s8, s8, %d' % QP_B)
E('buffer_store_dwordx4 v[4:7], v2, %s, s8 offen sc1' % srd(S_WS))
E('buffer_store_dwordx4 v[32:35], v2, %s, s8 offen offset:1024 sc1' % srd(S_WS))
E('v_mov_b32 v3, 1')
E('s_mov_b64 exec, 1')
E('buffer_atomic_add v3, off, %s, 0 offset:128 sc1' % srd(S_DBG))
E('s_mov_b64 exec, -1')
stamp(19)
for t in range(8): kv_load('K', t, K0 + 4 * t)
E('s_lshl_b32 s7, s%d, 10' % sBb)
E('s_add_u32 s9, s9, s7')
E('s_add_u32 s9, s9, %d' % QP_B)
L('L_qpoll')
E('s_mov_b32 s7, s9')
for i in range(8):
    E('buffer_load_dwordx4 %s, v1, %s, s7 offen offset:%d sc1' % (vr(24 + 4 * i, 4), srd(S_WS), (i & 1) * 2048))
    if i & 1: E('s_add_u32 s7, s7, 4096')
E('s_waitcnt vmcnt(0)')
E('v_xor_b32 v2, s10, v26')
E('v_xor_b32 v3, s11, v27')
for i in range(1, 8):
    E('v_xor_b32 v4, s10, v%d' % (26 + 4 * i))
    E('v_xor_b32 v5, s11, v%d' % (27 + 4 * i))
    E('v_or3_b32 v2, v2, v4, v5')
E('v_or_b32 v2, v2, v3')
E('v_cmp_ne_u32 vcc, 0, v2')
E('s_cbranch_vccz L_qgo')
spin_guard('L_qgo')
E('s_branch L_qpoll')
L('L_qgo')
stamp(20)
for t in range(8, 16): kv_load('K', t, K0 + 4 * t)
for i in (0, 2, 4, 6):
    for k in range(2): E('v_add_f32 v%d, v%d, v%d' % (24 + 4 * i + k, 24 + 4 * i + k, 28 + 4 * i + k))
for i in (0, 4):
    for k in range(2): E('v_add_f32 v%d, v%d, v%d' % (24 + 4 * i + k, 24 + 4 * i + k, 32 + 4 * i + k))
for k in range(2): E('v_add_f32 v%d, v%d, v%d' % (24 + k, 24 + k, 40 + k))
E('v_cvt_pk_bf16_f32 v24, v24, v25')
E('v_lshlrev_b32 v2, 2, v0')
E('ds_write_b32 v2, v24 offset:%d' % L_QBF)
E('s_waitcnt lgkmcnt(0)')
E('s_branch L_normV')
q[:] = []
L('L_norm0')
for t in range(16):
    throttle(D); kv_load('K', t, K0 + 4 * t)
L('L_normV')
dma_block()
for t in range(10):
    throttle(D); kv_load('V', t, Vreg(t))
nk = 16; nv0 = 10
E('s_barrier')
E('v_and_b32 v19, 15, v0')
E('v_lshlrev_b32 v19, 4, v19')
E('ds_read_b128 v[2:5], v19 offset:%d' % L_QBF)
E('s_waitcnt lgkmcnt(0)')
stamp(1)

def k_batch(bt):
    ts = list(range(4 * bt, 4 * bt + 4))
    wait_for('K%d' % ts[-1])
    for t in ts: E('v_dot2_f32_bf16 v%d, v%d, v2, 0' % (Sreg(t), K0 + 4 * t))
    for d in range(1, 4):
        for t in ts: E('v_dot2c_f32_bf16 v%d, v%d, v%d' % (Sreg(t), K0 + 4 * t + d, 2 + d))
    for step in BFLY:
        for t in ts: E('v_add_f32_dpp v%d, v%d, v%d %s%s' % (Sreg(t), Sreg(t), Sreg(t), step, DPP))
    for t in (ts[0], ts[2]):
        a, b = Sreg(t), Sreg(t + 1)
        E('v_cvt_pk_bf16_f32 v12, v%d, v%d' % (a, b))
        unpack(a, b, 12)
        E('v_mul_f32 v%d, s%d, v%d' % (a, sSCALE, a))
        E('v_mul_f32 v%d, s%d, v%d' % (b, sSCALE, b))
        E('v_cvt_pk_bf16_f32 v12, v%d, v%d' % (a, b))
        unpack(a, b, 12)

C('stream')
nv = nv0
kb = 0
def pump():
    global nk, nv
    if nk < 16:
        throttle(D); kv_load('K', nk, K0 + 4 * nk); nk += 1; return True
    if nv < 16:
        if nv >= 10 and kb <= (nv - 10) // 4: return False
        throttle(D); kv_load('V', nv, Vreg(nv)); nv += 1; return True
    return False
while nv < 16 or kb < 4:
    if kb < 4 and ('K%d' % (4 * kb + 3)) not in q and nk > 4 * kb + 3:
        k_batch(kb); kb += 1; continue
    if not pump():
        k_batch(kb); kb += 1
stamp(2)
E('s_cmp_eq_u32 s%d, 7' % sW)
E('s_cbranch_scc0 L_nocnt')
E('buffer_load_dword v23, off, %s, 0 offset:128 sc1' % srd(S_DBG))
L('L_nocnt')
C('wave max / exp / sum')
E('v_max3_f32 v12, v%d, v%d, v%d' % (Sreg(0), Sreg(1), Sreg(2)))
for t in range(3, 15, 2): E('v_max3_f32 v12, v12, v%d, v%d' % (Sreg(t), Sreg(t + 1)))
E('v_max_f32 v12, v12, v%d' % Sreg(15))
rows_allreduce(12, 13, 'max')
E('v_mul_f32 v13, s%d, v12' % sLOG2E)
for t in range(16): E('v_fma_f32 v%d, v%d, s%d, -v13' % (Sreg(t), Sreg(t), sLOG2E))
for t in range(16): E('v_exp_f32 v%d, v%d' % (Sreg(t), Sreg(t)))
E('s_nop 0')
E('v_add_f32 v14, v%d, v%d' % (Sreg(0), Sreg(1)))
E('v_add_f32 v15, v%d, v%d' % (Sreg(2), Sreg(3)))
for t in range(4, 16, 2):
    E('v_add_f32 v14, v14, v%d' % Sreg(t))
    E('v_add_f32 v15, v15, v%d' % Sreg(t + 1))
E('v_add_f32 v13, v14, v15')
rows_allreduce(13, 14, 'add')
E('s_lshl_b32 s6, s%d, 3' % sW)
E('v_mov_b32 v14, s6')
E('s_mov_b64 exec, 1')
E('ds_write_b64 v14, v[12:13] offset:%d' % L_ML)
E('s_mov_b64 exec, -1')
for i in range(8): E('v_cvt_pk_bf16_f32 v%d, v%d, v%d' % (2 + i, Sreg(2 * i), Sreg(2 * i + 1)))
stamp(3)
C('V phase')
for p in range(8):
    wait_for('V%d' % (2 * p + 1))
    pair_gemv(Vreg(2 * p), Vreg(2 * p + 1), 2 + p, 10, 124, first=(p == 0))
acc8_rows_reduce(10)
E('ds_write_b64 v21, v[10:11] offset:%d' % L_QP)
E('s_cmp_eq_u32 s%d, 7' % sW)
E('s_cbranch_scc0 L_ccd')
E('s_waitcnt vmcnt(0)')
L('L_cc')
E('v_readfirstlane_b32 s6, v23')
E('s_cmp_ge_u32 s6, 256')
E('s_cbranch_scc1 L_ccd')
spin_guard('L_ccd')
E('s_sleep 16')
E('buffer_load_dword v23, off, %s, 0 offset:128 sc1' % srd(S_DBG))
E('s_waitcnt vmcnt(0)')
E('s_branch L_cc')
L('L_ccd')
E('s_waitcnt lgkmcnt(0)')
E('s_barrier')
stamp(4)
E('s_cmp_eq_u32 s%d, 0' % sW)
E('s_cbranch_scc0 L_t1')
C('wave 0: publish O partial')
E('v_and_b32 v14, 15, v0')
E('v_lshlrev_b32 v14, 3, v14')
E('ds_read_b64 v[16:17], v14 offset:%d' % L_ML)
E('v_and_b32 v2, 31, v0')
E('v_lshlrev_b32 v2, 4, v2')
E('v_lshrrev_b32 v3, 5, v0')
E('v_lshl_add_u32 v4, v3, 12, v2')
for i in range(8): E('ds_read_b128 %s, v4 offset:%d' % (vr(24 + 4 * i, 4), L_QP + i * 512))
E('s_waitcnt lgkmcnt(8)')
E('v_mov_b32 v19, v16')
row_allreduce(19, 'max')
E('v_sub_f32 v16, v16, v19')
E('v_mul_f32 v16, s%d, v16' % sLOG2E)
E('v_exp_f32 v16, v16')
E('s_nop 0')
E('v_mul_f32 v20, v16, v17')
row_allreduce(20, 'add')
E('v_mov_b32 v17, v16')
E('s_nop 1')
E('v_mov_b32_dpp v17, v16 row_ror:8 row_mask:0xc bank_mask:0xf')
E('s_nop 1')
for i in range(8): E('v_mov_b32_dpp v%d, v17 row_newbcast:%d%s' % (56 + i, i, DPP))
E('s_waitcnt lgkmcnt(0)')
for k in range(4): E('v_mul_f32 v%d, v%d, v56' % (24 + k, 24 + k))
for i in range(1, 8):
    for k in range(4): E('v_fmac_f32 v%d, v%d, v%d' % (24 + k, 24 + 4 * i + k, 56 + i))
half_combine(24)
E('v_lshl_add_u32 v2, v3, 3, v2')
E('s_lshl_b32 s6, s%d, 12' % sH)
E('s_lshl_b32 s7, s%d, 9' % sR)
E('s_add_u32 s6, s6, s7')
E('s_add_u32 s6, s6, %d' % O_B)
E('buffer_store_dwordx2 v[24:25], v2, %s, s6 offen sc1' % srd(S_WS))
E('v_mov_b32 v16, v19')
E('v_mov_b32 v17, v20')
E('s_lshl_b32 s6, s%d, 5' % sBH)
E('s_lshl_b32 s7, s%d, 3' % sQT)
E('s_add_u32 s6, s6, s7')
E('s_add_u32 s6, s6, %d' % ML_B)
E('s_mov_b64 exec, 1')
E('buffer_store_dwordx2 v[16:17], v1, %s, s6 offen sc1' % srd(S_WS))
stamp(5)
E('s_endpgm')


SLP = int(OPT.get('slp', 0))
def masked_poll(tag, loads, tmp):
    for i in range(len(loads)): E('s_mov_b64 s[%d:%d], -1' % (16 + 2 * i, 17 + 2 * i))
    L('L_%spoll' % tag)
    for i, (d, n, va, sr, so, im) in enumerate(loads):
        E('s_mov_b64 exec, s[%d:%d]' % (16 + 2 * i, 17 + 2 * i))
        E('s_cbranch_execz L_%ssk%d' % (tag, i))
        op = {1: 'dword', 2: 'dwordx2', 4: 'dwordx4'}[n]
        E('buffer_load_%s %s, v%d, %s, s%d offen offset:%d sc1' % (op, vr(d, n) if n > 1 else 'v%d' % d, va, srd(sr), so, im))
        L('L_%ssk%d' % (tag, i))
    E('s_mov_b64 exec, -1')
    E('s_waitcnt vmcnt(0)')
    for i, (d, n, va, sr, so, im) in enumerate(loads):
        if n == 4:
            E('v_max3_u32 v%d, v%d, v%d, v%d' % (tmp, d, d + 1, d + 2))
            E('v_max_u32 v%d, v%d, v%d' % (tmp, tmp, d + 3))
            E('v_cmp_eq_u32 s[%d:%d], -1, v%d' % (16 + 2 * i, 17 + 2 * i, tmp))
        else:
            E('v_cmp_eq_u32 s[%d:%d], -1, v%d' % (16 + 2 * i, 17 + 2 * i, d))
    E('s_mov_b64 s[4:5], s[16:17]')
    for i in range(1, len(loads)): E('s_or_b64 s[4:5], s[4:5], s[%d:%d]' % (16 + 2 * i, 17 + 2 * i))
    E('s_cmp_eq_u64 s[4:5], 0')
    E('s_cbranch_scc1 L_%sgo' % tag)
    spin_guard('L_%sgo' % tag)
    if SLP: E('s_sleep %d' % SLP)
    E('s_branch L_%spoll' % tag)
    L('L_%sgo' % tag)

L('L_t1')
E('s_cmp_eq_u32 s%d, 7' % sW)
E('s_cbranch_scc0 L_t1b')
C('wave 7: gather O partials of this head, combine, bf16 -> LDS')
E('v_lshrrev_b32 v4, 5, v0')
E('v_and_b32 v5, 31, v0')
E('v_lshlrev_b32 v6, 11, v4')
E('v_lshl_add_u32 v6, v5, 4, v6')
E('v_lshlrev_b32 v7, 10, v4')
E('s_lshl_b32 s8, s%d, 12' % sH)
E('s_add_u32 s8, s8, %d' % O_B)
E('s_lshl_b32 s9, s%d, 5' % sH)
E('s_add_u32 s9, s9, %d' % ML_B)
E('v_lshlrev_b32 v12, 8, v4')
E('v_lshl_add_u32 v12, v5, 3, v12')
masked_poll('y', [(48 + 4 * i, 4, 6, S_WS, 8, i * 512) for i in range(4)] + [(64, 4, 7, S_WS, 9, 0), (68, 4, 7, S_WS, 9, 16)], 8)
stamp(6)
E('v_max3_f32 v8, v64, v66, v68')
E('v_max_f32 v8, v8, v70')
for i in range(4):
    E('v_sub_f32 v%d, v%d, v8' % (64 + 2 * i, 64 + 2 * i))
    E('v_mul_f32 v%d, s%d, v%d' % (64 + 2 * i, sLOG2E, 64 + 2 * i))
    E('v_exp_f32 v%d, v%d' % (64 + 2 * i, 64 + 2 * i))
E('s_nop 0')
E('v_mul_f32 v9, v64, v65')
for i in range(1, 4): E('v_fmac_f32 v9, v%d, v%d' % (64 + 2 * i, 65 + 2 * i))
E('v_rcp_f32 v9, v9')
for k in range(4): E('v_mul_f32 v%d, v64, v%d' % (48 + k, 48 + k))
for i in range(1, 4):
    for k in range(4): E('v_fmac_f32 v%d, v%d, v%d' % (48 + k, 64 + 2 * i, 48 + 4 * i + k))
for k in range(4): E('v_mul_f32 v%d, v9, v%d' % (48 + k, 48 + k))
E('v_cvt_pk_bf16_f32 v10, v48, v49')
E('v_cvt_pk_bf16_f32 v11, v50, v51')
E('ds_write_b64 v12, v[10:11] offset:%d' % L_OBF)
E('s_waitcnt lgkmcnt(0)')
E('s_barrier')
E('s_endpgm')

L('L_t1b')
E('s_cmp_lt_u32 s%d, 6' % sW)
E('s_cbranch_scc0 L_t2')
C('waves 1..5: y tile')
E('s_sub_u32 s15, s%d, 1' % sW)
E('v_lshrrev_b32 v2, 4, v0')
E('v_bfe_u32 v3, v0, 2, 2')
E('v_lshl_add_u32 v3, v2, 3, v3')
E('v_mul_u32_u24 v3, 160, v3')
E('v_and_b32 v4, 3, v0')
E('v_lshl_add_u32 v3, v4, 3, v3')
E('s_lshl_b32 s6, s15, 5')
E('v_add_u32 v3, s6, v3')
for s in range(4):
    for hf in range(2):
        E('ds_read_b64_tr_b16 %s, v3 offset:%d' % (vr(32 + 4 * s + 2 * hf, 2), L_WO + s * 5120 + hf * 640))
E('v_and_b32 v13, 1, v0')
E('v_lshlrev_b32 v13, 8, v13')
E('v_lshl_add_u32 v13, v2, 4, v13')
E('s_mul_i32 s6, s%d, 5' % sR)
E('s_add_u32 s6, s6, s15')
E('s_lshl_b32 s6, s6, 12')
E('s_lshl_b32 s7, s%d, 7' % sH)
E('s_add_u32 s6, s6, s7')
E('s_add_u32 s6, s6, %d' % Y_B)
E('v_lshlrev_b32 v14, 2, v0')
E('s_waitcnt lgkmcnt(0)')
E('s_barrier')
for s in range(4): E('ds_read_b128 %s, v13 offset:%d' % (vr(72 + 4 * s, 4), L_OBF + 64 * s))
for s in range(4):
    E('s_waitcnt lgkmcnt(%d)' % (3 - s))
    E('v_mfma_f32_16x16x32_bf16 v[88:91], %s, %s, %s' % (vr(72 + 4 * s, 4), vr(32 + 4 * s, 4), '0' if s == 0 else 'v[88:91]'))
E('s_nop 7')
E('s_mov_b64 exec, 0xffff')
E('buffer_store_dword v88, v14, %s, s6 offen sc1' % srd(S_WS))
E('buffer_store_dword v89, v14, %s, s6 offen offset:64 sc1' % srd(S_WS))
stamp(7)
E('s_endpgm')

def two_val_xor16(a, b, t0, t1):
    E('v_mov_b32 v%d, v%d' % (t0, a))
    E('v_mov_b32 v%d, v%d' % (t1, b))
    E('s_nop 1')
    E('v_permlane16_swap_b32 v%d, v%d' % (a, t0))
    E('v_permlane16_swap_b32 v%d, v%d' % (b, t1))
    E('v_add_f32 v%d, v%d, v%d' % (a, a, t0))
    E('v_add_f32 v%d, v%d, v%d' % (b, b, t1))

def res_add_pack():
    E('v_cvt_pk_bf16_f32 v34, v32, v33')
    unpack(32, 33, 34)
    unpack(5, 6, 4)
    E('v_add_f32 v32, v32, v5')
    E('v_add_f32 v33, v33, v6')
    E('v_cvt_pk_bf16_f32 v34, v32, v33')

L('L_t2')
E('s_cmp_eq_u32 s%d, 6' % sW)
E('s_cbranch_scc0 L_t3')
E('s_cmp_eq_u32 s%d, 2' % sROLE)
E('s_cbranch_scc0 L_t2b')
C('wave 6: h reducer')
E('v_bfe_u32 v2, v0, 2, 1')
E('v_mul_u32_u24 v2, 1280, v2')
E('v_and_b32 v3, 3, v0')
E('v_lshl_add_u32 v2, v3, 3, v2')
E('v_lshrrev_b32 v3, 5, v0')
E('v_lshl_add_u32 v2, v3, 2, v2')
E('s_lshl_b32 s8, s%d, 5' % sIDX)
E('buffer_load_dword v4, v2, %s, s8 offen' % srd(S_X))
E('s_lshl_b32 s9, s%d, 12' % sIDX)
E('s_add_u32 s9, s9, %d' % Y_B)
E('s_add_u32 s8, s8, %d' % H_B)
E('s_barrier')
masked_poll('h', [(32 + 4 * i, 4, 1, S_WS, 9, i * 1024) for i in range(4)], 8)
stamp(8)
for k in range(4):
    E('v_add_f32 v%d, v%d, v%d' % (32 + k, 32 + k, 36 + k))
    E('v_add_f32 v%d, v%d, v%d' % (40 + k, 40 + k, 44 + k))
for k in range(4): E('v_add_f32 v%d, v%d, v%d' % (32 + k, 32 + k, 40 + k))
E('s_nop 0')
for k in range(4): E('v_add_f32_dpp v%d, v%d, v%d row_ror:8%s' % (32 + k, 32 + k, 32 + k, DPP))
half_combine(32)
two_val_xor16(32, 33, 34, 35)
res_add_pack()
E('v_mov_b32 v35, 0x7fc07fc0')
E('v_cmp_eq_u32 vcc, -1, v34')
E('v_bfe_u32 v3, v0, 3, 2')
E('v_lshl_add_u32 v2, v3, 12, v2')
E('v_cndmask_b32 v34, v34, v35, vcc')
E('s_add_u32 s9, s8, 16384')
E('buffer_store_dword v34, v2, %s, s8 offen sc1' % srd(S_WS))
E('buffer_store_dword v34, v2, %s, s9 offen sc1' % srd(S_WS))
stamp(9)
E('s_endpgm')

L('L_t2b')
E('s_cmp_eq_u32 s%d, 3' % sROLE)
E('s_cbranch_scc0 L_end')
C('wave 6: final reducer')
E('s_cmp_ge_u32 s%d, 40' % sIDX)
E('s_cselect_b32 s6, 1, 0')
E('s_mul_i32 s7, s6, 40')
E('s_sub_u32 s7, s%d, s7' % sIDX)
E('s_mul_i32 s8, s6, 1280')
E('s_lshl_b32 s7, s7, 5')
E('s_add_u32 s8, s8, s7')
E('v_and_b32 v3, 3, v0')
E('v_lshlrev_b32 v2, 3, v3')
E('v_lshrrev_b32 v3, 5, v0')
E('v_lshl_add_u32 v2, v3, 2, v2')
E('s_mul_i32 s9, s%d, %d' % (sIDX, ZS))
E('s_add_u32 s9, s9, %d' % Z_B)
E('s_add_u32 s10, s9, 4096')
E('s_lshl_b32 s11, s%d, 12' % sR)
E('s_add_u32 s11, s11, s8')
E('s_add_u32 s11, s11, %d' % H_B)
E('s_mov_b32 s%d, s38' % S_A)
E('s_mov_b32 s%d, s39' % (S_A + 1))
E('s_add_u32 s%d, s9, %d' % (S_A + 2, ZS))
E('s_mov_b32 s%d, 0x20000' % (S_A + 3))
E('s_barrier')
masked_poll('e', [(4, 1, 2, S_WS, 11, 0)], 8)
E('s_barrier')
masked_poll('f', [(32 + 4 * i, 4, 1, S_A, 9 if i < 4 else 10, (i & 3) * 1024) for i in range(7)], 8)
stamp(14)
for k in range(4):
    E('v_add_f32 v%d, v%d, v%d' % (32 + k, 32 + k, 36 + k))
    E('v_add_f32 v%d, v%d, v%d' % (40 + k, 40 + k, 44 + k))
    E('v_add_f32 v%d, v%d, v%d' % (48 + k, 48 + k, 52 + k))
for k in range(4):
    E('v_add_f32 v%d, v%d, v%d' % (32 + k, 32 + k, 40 + k))
    E('v_add_f32 v%d, v%d, v%d' % (48 + k, 48 + k, 56 + k))
for k in range(4): E('v_add_f32 v%d, v%d, v%d' % (32 + k, 32 + k, 48 + k))
E('s_nop 0')
for k in range(4): E('v_add_f32_dpp v%d, v%d, v%d row_ror:4%s' % (32 + k, 32 + k, 32 + k, DPP))
for k in range(4): E('v_add_f32_dpp v%d, v%d, v%d row_ror:8%s' % (32 + k, 32 + k, 32 + k, DPP))
half_combine(32)
two_val_xor16(32, 33, 34, 35)
res_add_pack()
E('s_mov_b32 exec_lo, 0xf')
E('s_mov_b32 exec_hi, 0xf')
E('buffer_store_dword v34, v2, %s, s8 offen' % srd(S_OUT))
stamp(15)
E('s_endpgm')

L('L_t3')
E('s_sub_u32 s15, s%d, 8' % sW)
E('v_lshrrev_b32 v2, 4, v0')
E('v_bfe_u32 v3, v0, 2, 2')
E('v_and_b32 v4, 3, v0')
E('s_cmp_eq_u32 s%d, 1' % sTEAM)
E('s_cbranch_scc0 L_t4')
C('F1 team: partial gate/up')
E('s_and_b32 s13, s15, 1')
E('s_lshr_b32 s14, s15, 1')
E('v_lshl_add_u32 v5, v2, 3, v3')
E('v_lshlrev_b32 v5, 7, v5')
E('v_lshl_add_u32 v5, v4, 3, v5')
E('s_lshl_b32 s6, s13, 14')
E('s_lshl_b32 s7, s14, 5')
E('s_add_u32 s6, s6, s7')
E('v_add_u32 v5, s6, v5')
for s in range(4):
    for hf in range(2):
        E('ds_read_b64_tr_b16 %s, v5 offset:%d' % (vr(32 + 4 * s + 2 * hf, 2), L_F + s * 4096 + hf * 512))
E('v_and_b32 v7, 1, v0')
E('v_mul_u32_u24 v8, 1280, v7')
E('v_lshl_add_u32 v8, v2, 4, v8')
E('s_lshl_b32 s7, s%d, 8' % sKAP)
E('v_add_u32 v9, s7, v8')
E('s_lshl_b32 s8, s%d, 2' % sTIDX)
E('s_add_u32 s12, s14, s8')
E('s_mul_i32 s12, s12, 1280')
E('s_add_u32 s12, s12, s7')
E('s_lshl_b32 s8, s13, 7')
E('s_add_u32 s12, s12, s8')
E('s_add_u32 s12, s12, %d' % G_B)
E('v_lshlrev_b32 v14, 2, v0')
E('v_mul_u32_u24 v7, 20, v0')
E('s_mul_i32 s8, s15, 1280')
E('s_lshl_b32 s9, s%d, 12' % sR)
E('s_add_u32 s9, s9, s8')
E('s_add_u32 s9, s9, %d' % H_B)
E('s_barrier')
E('s_cmp_lt_u32 s15, 2')
E('s_cbranch_scc0 L_nb5')
masked_poll('n', [(64, 4, 7, S_WS, 9, 0), (68, 1, 7, S_WS, 9, 16)], 8)
stamp(10)
layernorm(64, 70, 80)
E('v_add_u32 v7, s8, v7')
for i in range(5): E('ds_write_b32 v7, v%d offset:%d' % (64 + i, L_L2 + 4 * i))
L('L_nb5')
E('s_waitcnt lgkmcnt(0)')
E('s_barrier')
stamp(11)
for s in range(4): E('ds_read_b128 %s, v9 offset:%d' % (vr(64 + 4 * s, 4), L_L2 + 64 * s))
for s in range(4):
    E('s_waitcnt lgkmcnt(%d)' % (3 - s))
    E('v_mfma_f32_16x16x32_bf16 v[88:91], %s, %s, %s' % (vr(64 + 4 * s, 4), vr(32 + 4 * s, 4), '0' if s == 0 else 'v[88:91]'))
E('s_nop 7')
E('s_mov_b64 exec, 0xffff')
E('buffer_store_dword v88, v14, %s, s12 offen sc1' % srd(S_WS))
E('buffer_store_dword v89, v14, %s, s12 offen offset:64 sc1' % srd(S_WS))
stamp(23)
E('s_endpgm')

L('L_t4')
E('s_cmp_eq_u32 s%d, 2' % sTEAM)
E('s_cbranch_scc0 L_end')
C('F2 team: hm + down partial')
E('v_lshl_add_u32 v6, v2, 2, v3')
E('v_mul_u32_u24 v6, 1280, v6')
E('v_lshl_add_u32 v6, v4, 3, v6')
E('s_mul_i32 s6, s15, 160')
E('v_add_u32 v6, s6, v6')
for t in range(5): E('ds_read_b64_tr_b16 %s, v6 offset:%d' % (vr(52 + 2 * t, 2), L_F + t * 32))
E('v_and_b32 v7, 1, v0')
E('v_lshlrev_b32 v9, 6, v7')
E('v_lshl_add_u32 v9, v2, 4, v9')
E('s_mul_i32 s9, s%d, 1280' % sTIDX)
E('s_add_u32 s9, s9, %d' % G_B)
E('s_mul_i32 s6, s15, %d' % (5 * ZS))
E('s_lshl_b32 s7, s%d, 6' % sTIDX)
E('s_add_u32 s12, s6, s7')
E('s_add_u32 s12, s12, %d' % Z_B)
E('s_add_u32 s13, s12, %d' % (40 * ZS))
E('v_lshlrev_b32 v14, 2, v0')
E('v_lshlrev_b32 v15, 3, v0')
E('s_barrier')
E('s_cmp_eq_u32 s15, 0')
E('s_cbranch_scc0 L_gb')
masked_poll('g', [(64 + 4 * i, 4, 9, S_WS, 9, i * 128) for i in range(10)], 8)
stamp(24)
for m in range(2):
    base = 64 + 4 * m
    for k in range(4):
        E('v_add_f32 v%d, v%d, v%d' % (base + k, base + k, base + 8 + k))
        E('v_add_f32 v%d, v%d, v%d' % (base + 16 + k, base + 16 + k, base + 24 + k))
    for k in range(4): E('v_add_f32 v%d, v%d, v%d' % (base + k, base + k, base + 32 + k))
    for k in range(4): E('v_add_f32 v%d, v%d, v%d' % (base + k, base + k, base + 16 + k))
    for k in (0, 2):
        E('v_cvt_pk_bf16_f32 v10, v%d, v%d' % (base + k, base + k + 1))
        unpack(base + k, base + k + 1, 10)
for k in range(4): E('v_mul_f32 v%d, v%d, v%d' % (64 + k, 64 + k, 68 + k))
E('v_cvt_pk_bf16_f32 v10, v64, v65')
E('v_cvt_pk_bf16_f32 v11, v66, v67')
E('ds_write_b64 v15, v[10:11] offset:%d' % L_P)
L('L_gb')
E('s_waitcnt lgkmcnt(0)')
E('s_barrier')
E('ds_read_b64 v[10:11], v15 offset:%d' % L_P)
E('s_waitcnt lgkmcnt(0)')
for t in range(5): E('v_mfma_f32_16x16x16_bf16 %s, v[10:11], %s, 0' % (vr(104 + 4 * t, 4), vr(52 + 2 * t, 2)))
E('s_nop 7')
E('s_mov_b64 exec, 0xffff')
for t in range(5):
    E('buffer_store_dword v%d, v14, %s, s12 offen sc1' % (104 + 4 * t, srd(S_WS)))
    E('buffer_store_dword v%d, v14, %s, s13 offen sc1' % (105 + 4 * t, srd(S_WS)))
    if t < 4:
        E('s_add_u32 s12, s12, %d' % ZS)
        E('s_add_u32 s13, s13, %d' % ZS)
stamp(12)
L('L_end')
E('s_endpgm')
out.append('.section .rodata,"a"')
out.append('.p2align 6')
out.append('.amdhsa_kernel %s' % NAME)
out.append('  .amdhsa_next_free_vgpr 128')
out.append('  .amdhsa_next_free_sgpr 102')
out.append('  .amdhsa_accum_offset 128')
out.append('  .amdhsa_group_segment_fixed_size 0')
out.append('  .amdhsa_kernarg_size 96')
out.append('  .amdhsa_user_sgpr_count 2')
out.append('  .amdhsa_user_sgpr_kernarg_segment_ptr 1')
out.append('  .amdhsa_system_sgpr_workgroup_id_x 1')
out.append('  .amdhsa_float_denorm_mode_32 3')
out.append('.end_amdhsa_kernel')
print('\n'.join(out))
```

```python
import sys

NAME = 'sequential_preLN__mha_block_cached__glu_gated_bilinear__decode_kernel'
OPT = dict(a.split('=') for a in sys.argv[1:] if '=' in a)
TS = int(OPT.get('ts', 0))
def flag(k, d):
    v = OPT.get(k, d)
    return '' if v == '-' else v.replace('+', ' ')
KVFLAG = flag('kv', 'nt')
WFLAG = flag('w', 'nt')
WQFLAG = flag('wq', '-')
D = int(OPT.get('d', 6))
D1 = int(OPT.get('d1', 8))
DMAPOS = OPT.get('dma', 'end')

out = []
def E(s): out.append('  ' + s)
def L(s): out.append(s + ':')
def C(s): out.append('  ; ' + s)

ML_B = 0x0
O_B = 0x10000
Y_B = 0x40000
H_B = 0x80000
Z_B = 0x100000
ZS = 108 * 64
TS_B = 0x800000
WS_BYTES = 0x10000000
L_QP = 0x0
L_QBF = 0x2000
L_ML = 0x2100
L_OBF = 0x2200
L_L2 = 0x2C00
L_P = 0x3600
L_DUMMY = 0x3A00
L_WO = 0x4000
L_F = 0xC000
LDS_BYTES = 0x14000
G_B = 0x300000

S_K, S_V, S_WQ, S_WS, S_X, S_A, S_B, S_DBG, S_OUT = 40, 44, 48, 52, 56, 60, 64, 68, 72
S_C = 48
sTEAM, sTIDX, sKAP = 89, 90, 97
sW, sH, sBb, sQT, sR, sKV, sROLE, sIDX, sMU, sXCD = 76, 77, 78, 79, 80, 81, 82, 83, 84, 85
sSELLO, sSELHI, sSPIN, sT2, sT3 = 86, 87, 88, 91, 92
sSCALE, sLOG2E, sBH, sWQO = 93, 94, 95, 96
sTS = 98

def srd(n): return 's[%d:%d]' % (n, n + 3)
def vr(a, n): return 'v[%d:%d]' % (a, a + n - 1)
DPP = ' row_mask:0xf bank_mask:0xf'
BFLY = ('quad_perm:[1,0,3,2]', 'quad_perm:[2,3,0,1]', 'row_half_mirror', 'row_mirror')

def stamp(idx, va=18, vd=22):
    if not TS: return
    E('s_memrealtime s[%d:%d]' % (sTS, sTS + 1))
    E('s_waitcnt lgkmcnt(0)')
    E('v_mov_b32 v%d, s%d' % (vd, sTS))
    E('s_lshl_b32 s%d, s2, 11' % sT3)
    E('s_lshl_b32 s%d, s%d, 7' % (sT2, sW))
    E('s_add_u32 s%d, s%d, s%d' % (sT3, sT3, sT2))
    E('s_add_u32 s%d, s%d, %d' % (sT3, sT3, TS_B + idx * 4))
    E('v_mov_b32 v%d, s%d' % (va, sT3))
    E('buffer_store_dword v%d, v%d, %s, 0 offen' % (vd, va, srd(S_WS)))

DBGT = int(OPT.get('dbgt', 0))
def dbgstamp(word, invert=False):
    if not DBGT: return
    E('s_memrealtime s[%d:%d]' % (sTS, sTS + 1))
    E('s_waitcnt lgkmcnt(0)')
    if invert: E('s_not_b32 s%d, s%d' % (sTS, sTS))
    E('v_mov_b32 v22, s%d' % sTS)
    E('s_mov_b64 s[100:101], exec')
    E('s_mov_b64 exec, 1')
    E('buffer_atomic_umax v22, off, %s, 0 offset:%d sc1' % (srd(S_DBG), word * 4))
    E('s_mov_b64 exec, s[100:101]')

def row_allreduce(v, op):
    for step in BFLY:
        E('s_nop 1')
        E('v_%s_f32_dpp v%d, v%d, v%d %s%s' % (op, v, v, v, step, DPP))

def rows_allreduce(v, tmp, op):
    ins = 'v_%s_f32' % op
    E('v_mov_b32 v%d, v%d' % (tmp, v))
    E('s_nop 1')
    E('v_permlane32_swap_b32 v%d, v%d' % (v, tmp))
    E('%s v%d, v%d, v%d' % (ins, v, v, tmp))
    E('v_mov_b32 v%d, v%d' % (tmp, v))
    E('s_nop 1')
    E('v_permlane16_swap_b32 v%d, v%d' % (v, tmp))
    E('%s v%d, v%d, v%d' % (ins, v, v, tmp))

def wave_allreduce(v, tmp, op):
    row_allreduce(v, op)
    rows_allreduce(v, tmp, op)

def rne_bf16(v):
    E('v_cvt_pk_bf16_f32 v%d, v%d, v%d' % (v, v, v))
    E('v_and_b32 v%d, 0xffff0000, v%d' % (v, v))

def unpack(lo, hi, src):
    E('v_lshlrev_b32 v%d, 16, v%d' % (lo, src))
    E('v_and_b32 v%d, 0xffff0000, v%d' % (hi, src))

def layernorm(X, F, T):
    for i in range(5): unpack(F + 2 * i, F + 2 * i + 1, X + i)
    E('v_add_f32 v%d, v%d, v%d' % (T, F, F + 1))
    E('v_add_f32 v%d, v%d, v%d' % (T + 1, F + 2, F + 3))
    for i in (4, 6, 8):
        E('v_add_f32 v%d, v%d, v%d' % (T, T, F + i))
        E('v_add_f32 v%d, v%d, v%d' % (T + 1, T + 1, F + i + 1))
    E('v_add_f32 v%d, v%d, v%d' % (T, T, T + 1))
    wave_allreduce(T, T + 1, 'add')
    E('v_mul_f32 v%d, 0x3acccccd, v%d' % (T, T))
    E('v_sub_f32 v%d, v%d, v%d' % (T + 2, F, T))
    E('v_mul_f32 v%d, v%d, v%d' % (T + 1, T + 2, T + 2))
    for i in range(1, 10):
        E('v_sub_f32 v%d, v%d, v%d' % (T + 2, F + i, T))
        E('v_fmac_f32 v%d, v%d, v%d' % (T + 1, T + 2, T + 2))
    wave_allreduce(T + 1, T + 2, 'add')
    E('v_mul_f32 v%d, 0x3acccccd, v%d' % (T + 1, T + 1))
    rne_bf16(T)
    rne_bf16(T + 1)
    E('v_add_f32 v%d, 0x3727c5ac, v%d' % (T + 1, T + 1))
    rne_bf16(T + 1)
    E('v_sqrt_f32 v%d, v%d' % (T + 1, T + 1))
    E('s_nop 0')
    rne_bf16(T + 1)
    E('v_rcp_f32 v%d, v%d' % (T + 2, T + 1))
    for i in range(5):
        a, b = F + 2 * i, F + 2 * i + 1
        E('v_sub_f32 v%d, v%d, v%d' % (a, a, T))
        E('v_sub_f32 v%d, v%d, v%d' % (b, b, T))
        E('v_cvt_pk_bf16_f32 v%d, v%d, v%d' % (X + i, a, b))
        unpack(a, b, X + i)
        for r in (a, b):
            E('v_mul_f32 v%d, v%d, v%d' % (T + 3, r, T + 2))
            E('v_fma_f32 v%d, -v%d, v%d, v%d' % (r, T + 3, T + 1, r))
            E('v_fma_f32 v%d, v%d, v%d, v%d' % (r, r, T + 2, T + 3))
        E('v_cvt_pk_bf16_f32 v%d, v%d, v%d' % (X + i, a, b))

def pair_gemv(Wa, Wb, Lp, ACC, T, first=False):
    for d in range(4):
        t0, t1 = T + (2 * d) % 4, T + (2 * d + 1) % 4
        E('v_perm_b32 v%d, v%d, v%d, s%d' % (t0, Wb + d, Wa + d, sSELLO))
        E('v_perm_b32 v%d, v%d, v%d, s%d' % (t1, Wb + d, Wa + d, sSELHI))
        if first:
            E('v_dot2_f32_bf16 v%d, v%d, v%d, 0' % (ACC + 2 * d, t0, Lp))
            E('v_dot2_f32_bf16 v%d, v%d, v%d, 0' % (ACC + 2 * d + 1, t1, Lp))
        else:
            E('v_dot2c_f32_bf16 v%d, v%d, v%d' % (ACC + 2 * d, t0, Lp))
            E('v_dot2c_f32_bf16 v%d, v%d, v%d' % (ACC + 2 * d + 1, t1, Lp))

def acc8_rows_reduce(A):
    E('s_nop 2')
    for i in range(4): E('v_permlane32_swap_b32 v%d, v%d' % (A + i, A + 4 + i))
    for i in range(4): E('v_add_f32 v%d, v%d, v%d' % (A + i, A + i, A + 4 + i))
    E('s_nop 0')
    E('v_permlane16_swap_b32 v%d, v%d' % (A, A + 2))
    E('v_permlane16_swap_b32 v%d, v%d' % (A + 1, A + 3))
    E('v_add_f32 v%d, v%d, v%d' % (A, A, A + 2))
    E('v_add_f32 v%d, v%d, v%d' % (A + 1, A + 1, A + 3))

def half_combine(R):
    E('s_nop 1')
    E('v_permlane32_swap_b32 v%d, v%d' % (R, R + 2))
    E('v_permlane32_swap_b32 v%d, v%d' % (R + 1, R + 3))
    E('v_add_f32 v%d, v%d, v%d' % (R, R, R + 2))
    E('v_add_f32 v%d, v%d, v%d' % (R + 1, R + 1, R + 3))

def spin_guard(label_bail):
    E('s_add_u32 s%d, s%d, 1' % (sSPIN, sSPIN))
    E('s_cmp_gt_u32 s%d, 0x200000' % sSPIN)
    E('s_cbranch_scc1 %s' % label_bail)

def build_srd(n, ptr, nbytes):
    E('s_mov_b32 s%d, s%d' % (n, ptr))
    E('s_mov_b32 s%d, s%d' % (n + 1, ptr + 1))
    E('s_mov_b32 s%d, 0x%x' % (n + 2, nbytes))
    E('s_mov_b32 s%d, 0x20000' % (n + 3))

out.append('; @launch grid=(256,1,1) block=(1024,1,1) lds=%d' % LDS_BYTES)
out.append('.amdgcn_target "amdgcn-amd-amdhsa--gfx950"')
out.append('.text')
out.append('.globl %s' % NAME)
out.append('.p2align 8')
out.append('.type %s,@function' % NAME)
L(NAME)
E('s_cmp_ge_u32 s2, 256')
E('s_cbranch_scc1 L_end')
E('s_load_dwordx16 s[16:31], s[0:1], 0')
E('s_load_dwordx8 s[32:39], s[0:1], 64')
E('v_lshrrev_b32 v3, 6, v0')
E('v_and_b32 v0, 63, v0')
E('v_readfirstlane_b32 s%d, v3' % sW)
E('v_lshlrev_b32 v1, 4, v0')
E('s_lshr_b32 s%d, s2, 3' % sH)
E('s_and_b32 s%d, s2, 7' % sR)
E('s_lshr_b32 s%d, s%d, 2' % (sBb, sR))
E('s_and_b32 s%d, s%d, 3' % (sQT, sR))
E('s_lshl_b32 s%d, s%d, 5' % (sBH, sBb))
E('s_add_u32 s%d, s%d, s%d' % (sBH, sBH, sH))
E('s_lshl_b32 s%d, s%d, 20' % (sKV, sBH))
E('s_lshl_b32 s6, s%d, 18' % sQT)
E('s_add_u32 s%d, s%d, s6' % (sKV, sKV))
E('s_lshl_b32 s6, s%d, 14' % sW)
E('s_add_u32 s%d, s%d, s6' % (sKV, sKV))
E('s_mov_b32 s%d, 0' % sTEAM)
E('s_mov_b32 s%d, 0' % sKAP)
E('s_mul_i32 s6, s2, 52429')
E('s_lshr_b32 s%d, s6, 18' % sTIDX)
E('s_mul_i32 s6, s%d, 5' % sTIDX)
E('s_sub_u32 s%d, s2, s6' % sKAP)
E('s_cmp_lt_u32 s2, 135')
E('s_cselect_b32 s%d, 1, 0' % sTEAM)
E('s_cbranch_scc1 L_role1')
E('s_sub_u32 s%d, s2, 135' % sTIDX)
E('s_cmp_lt_u32 s2, 243')
E('s_cselect_b32 s%d, 2, 0' % sTEAM)
L('L_role1')
E('s_mov_b32 s%d, 0' % sROLE)
E('s_sub_u32 s%d, s2, 136' % sIDX)
E('s_cmp_lt_u32 s2, 136')
E('s_cbranch_scc1 L_roledone')
E('s_mov_b32 s%d, 3' % sROLE)
E('s_cmp_lt_u32 s2, 216')
E('s_cbranch_scc1 L_roledone')
E('s_mov_b32 s%d, 2' % sROLE)
E('s_sub_u32 s%d, s2, 216' % sIDX)
L('L_roledone')
E('s_mov_b32 s%d, 0x05040100' % sSELLO)
E('s_mov_b32 s%d, 0x07060302' % sSELHI)
E('s_mov_b32 s%d, 0x3db504f3' % sSCALE)
E('s_mov_b32 s%d, 0x3fb8aa3b' % sLOG2E)
E('s_mov_b32 s%d, 0' % sSPIN)
E('v_lshrrev_b32 v4, 4, v0')
E('v_and_b32 v5, 15, v0')
E('s_mov_b32 s6, %d' % (160 * 8192))
E('v_mul_lo_u32 v23, v4, s6')
E('v_lshl_add_u32 v23, v5, 4, v23')
E('v_mul_u32_u24 v3, 20, v0')
E('s_mul_i32 s6, s%d, 1280' % sBb)
E('v_add_u32 v3, s6, v3')
E('s_mul_i32 s%d, s%d, %d' % (sWQO, sW, 10 * 8192))
E('s_lshl_b32 s6, s%d, 8' % sH)
E('s_add_u32 s%d, s%d, s6' % (sWQO, sWQO))
for r in (12, 13, 14, 15): E('v_mov_b32 v%d, -1' % r)
E('s_waitcnt lgkmcnt(0)')
build_srd(S_X, 16, 2560)
build_srd(S_K, 18, 0x4000000)
build_srd(S_V, 20, 0x4000000)
build_srd(S_WQ, 22, 640 * 8192)
build_srd(S_WS, 38, WS_BYTES)
build_srd(S_DBG, 36, 256)
build_srd(S_OUT, 34, 2560)
stamp(0)

WQ0, K0 = 24, 64
q = []
def issue(name, text):
    q.append(name); E(text)
def wait_for(name):
    if name not in q: return
    i = q.index(name)
    E('s_waitcnt vmcnt(%d)' % (len(q) - 1 - i))
    del q[:i + 1]
def throttle(d):
    if len(q) >= d: wait_for(q[len(q) - d])
def kv_load(which, t, reg):
    E('s_add_u32 s6, s%d, %d' % (sKV, (t >> 2) * 4096))
    issue('%s%d' % (which, t), 'buffer_load_dwordx4 %s, v1, %s, s6 offen offset:%d %s' % (vr(reg, 4), srd(S_K if which == 'K' else S_V), (t & 3) * 1024, KVFLAG))
def wq_load(t):
    if t: E('s_add_u32 s%d, s%d, 8192' % (sWQO, sWQO))
    issue('WQ%d' % t, 'buffer_load_dwordx4 %s, v23, %s, s%d offen %s' % (vr(WQ0 + 4 * t, 4), srd(S_WQ), sWQO, WQFLAG))
def Sreg(t): return 6 + t if t < 6 else K0 + 4 * t
def Vreg(t): return WQ0 + 4 * t if t < 10 else K0 + 4 * (t - 10)

def dma_block():
    C('tail weight DMA: 2 wo slots + 2 ffn slots per wave')
    E('s_mov_b32 s%d, s24' % S_A)
    E('s_mov_b32 s%d, s25' % (S_A + 1))
    E('s_mul_i32 s10, s%d, %d' % (sH, 128 * 1280))
    E('s_add_u32 s%d, s10, %d' % (S_A + 2, 128 * 1280))
    E('s_mov_b32 s%d, 0x20000' % (S_A + 3))
    E('s_mul_i32 s7, s%d, 160' % sR)
    E('s_add_u32 s10, s10, s7')
    E('s_lshl_b32 s6, s%d, 6' % sW)
    E('v_add_u32 v12, s6, v0')
    E('v_add_u32 v13, 1024, v12')
    E('s_movk_i32 s7, 6554')
    for c, d in ((12, 14), (13, 15)):
        E('v_mul_u32_u24 v16, s7, v%d' % c)
        E('v_lshrrev_b32 v16, 16, v16')
        E('v_mul_u32_u24 v17, 10, v16')
        E('v_sub_u32 v17, v%d, v17' % c)
        E('v_mul_u32_u24 v%d, 1280, v16' % d)
        E('v_lshl_add_u32 v%d, v17, 4, v%d' % (d, d))
    E('s_lshl_b32 s8, s%d, 10' % sW)
    E('s_add_u32 s9, s8, %d' % L_WO)
    E('s_mov_b32 m0, s9')
    E('s_add_u32 s9, s9, 16384')
    throttle(D)
    issue('W0', 'buffer_load_dwordx4 v14, %s, s10 offen %s lds' % (srd(S_A), WFLAG))
    E('s_mov_b32 m0, s9')
    build_srd(S_B, 28, 0)
    build_srd(S_C, 30, 0)
    throttle(D)
    issue('W1', 'buffer_load_dwordx4 v15, %s, s10 offen %s lds' % (srd(S_A), WFLAG))
    E('s_mov_b32 s10, 0')
    E('s_mov_b32 s11, 0')
    E('v_mov_b32 v16, v1')
    E('s_cmp_eq_u32 s%d, 1' % sTEAM)
    E('s_cbranch_scc0 L_dma2')
    E('s_mov_b32 s%d, %d' % (S_B + 2, 640 * 3456))
    E('s_mov_b32 s%d, %d' % (S_C + 2, 640 * 3456))
    E('v_lshrrev_b32 v16, 3, v0')
    E('v_mul_u32_u24 v16, 3456, v16')
    E('v_and_b32 v17, 7, v0')
    E('v_lshl_add_u32 v16, v17, 4, v16')
    E('s_lshl_b32 s6, s%d, 7' % sKAP)
    E('s_lshl_b32 s7, s%d, 3' % sW)
    E('s_add_u32 s6, s6, s7')
    E('s_mul_i32 s10, s6, 3456')
    E('s_lshl_b32 s7, s%d, 7' % sTIDX)
    E('s_add_u32 s10, s10, s7')
    E('s_mov_b32 s11, s10')
    E('s_branch L_dma3')
    L('L_dma2')
    E('s_cmp_eq_u32 s%d, 2' % sTEAM)
    E('s_cbranch_scc0 L_dma3')
    E('s_mov_b32 s%d, s32' % S_B)
    E('s_mov_b32 s%d, s33' % (S_B + 1))
    E('s_mov_b32 s%d, s32' % S_C)
    E('s_mov_b32 s%d, s33' % (S_C + 1))
    E('s_mul_i32 s10, s%d, 20480' % sTIDX)
    E('s_add_u32 s%d, s10, 20480' % (S_B + 2))
    E('s_add_u32 s%d, s10, 20480' % (S_C + 2))
    E('s_add_u32 s10, s10, s8')
    E('s_add_u32 s11, s10, 16384')
    L('L_dma3')
    E('s_add_u32 s9, s8, %d' % L_F)
    E('s_mov_b32 m0, s9')
    E('s_add_u32 s9, s9, 16384')
    throttle(D)
    issue('F0', 'buffer_load_dwordx4 v16, %s, s10 offen %s lds' % (srd(S_B), WFLAG))
    E('s_mov_b32 m0, s9')
    E('s_nop 0')
    throttle(D)
    issue('F1', 'buffer_load_dwordx4 v16, %s, s11 offen %s lds' % (srd(S_C), WFLAG))

QP_B = 0x200000
E('v_and_b32 v19, 15, v0')
E('v_lshlrev_b32 v19, 5, v19')
E('v_lshrrev_b32 v20, 4, v0')
E('v_lshl_add_u32 v20, v20, 3, v19')
E('s_lshl_b32 s6, s%d, 9' % sW)
E('v_add_u32 v21, s6, v20')
E('s_cmp_eq_u32 s%d, 0' % sW)
E('s_cbranch_scc0 L_norm0')
C('service wave: nonce, q partial over 80 wq rows, both b')
dbgstamp(4, True)
E('s_memrealtime s[8:9]')
E('v_mul_u32_u24 v3, 20, v0')
E('buffer_load_dwordx4 v[4:7], v3, %s, 0 offen' % srd(S_X))
E('buffer_load_dword v8, v3, %s, 0 offen offset:16' % srd(S_X))
E('buffer_load_dwordx4 v[24:27], v3, %s, 0 offen offset:1280' % srd(S_X))
E('buffer_load_dword v28, v3, %s, 0 offen offset:1296' % srd(S_X))
E('v_lshrrev_b32 v9, 4, v0')
E('v_and_b32 v10, 15, v0')
E('s_mov_b32 s6, %d' % (20 * 8192))
E('v_mul_lo_u32 v2, v9, s6')
E('v_lshl_add_u32 v2, v10, 4, v2')
E('s_mul_i32 s7, s%d, %d' % (sR, 80 * 8192))
E('s_lshl_b32 s6, s%d, 8' % sH)
E('s_add_u32 s7, s7, s6')
for t in range(20):
    if t: E('s_add_u32 s7, s7, 8192')
    E('buffer_load_dwordx4 %s, v2, %s, s7 offen %s' % (vr(48 + 4 * t, 4), srd(S_WQ), WQFLAG))
E('s_waitcnt lgkmcnt(0)')
E('s_or_b32 s9, s9, 0x80000000')
E('v_mov_b32 v44, s8')
E('v_mov_b32 v45, s9')
E('v_mov_b32 v46, 0')
E('v_mov_b32 v47, 0')
E('s_mov_b64 exec, 1')
E('buffer_atomic_cmpswap_x2 v[44:47], off, %s, 0 sc0 sc1' % srd(S_DBG))
C('sentinel resets for every slot this WG will write (data v[12:15] = -1)')
E('s_lshl_b32 s6, s%d, 5' % sBH)
E('s_lshl_b32 s7, s%d, 3' % sQT)
E('s_add_u32 s6, s6, s7')
E('s_add_u32 s6, s6, %d' % ML_B)
E('buffer_store_dwordx2 v[12:13], v1, %s, s6 offen sc1' % srd(S_WS))
E('s_lshl_b32 s6, s%d, 12' % sH)
E('s_lshl_b32 s7, s%d, 9' % sR)
E('s_add_u32 s6, s6, s7')
E('s_add_u32 s6, s6, %d' % O_B)
E('s_mov_b32 exec_lo, -1')
E('buffer_store_dwordx4 v[12:15], v1, %s, s6 offen sc1' % srd(S_WS))
E('s_mov_b64 exec, -1')
E('v_lshrrev_b32 v9, 3, v0')
E('v_lshlrev_b32 v9, 12, v9')
E('v_and_b32 v10, 7, v0')
E('v_lshl_add_u32 v9, v10, 4, v9')
E('s_mul_i32 s6, s%d, %d' % (sR, 5 * 4096))
E('s_lshl_b32 s7, s%d, 7' % sH)
E('s_add_u32 s6, s6, s7')
E('s_add_u32 s6, s6, %d' % Y_B)
E('s_mov_b32 exec_hi, 0xff')
E('buffer_store_dwordx4 v[12:15], v9, %s, s6 offen sc1' % srd(S_WS))
E('s_mov_b64 exec, -1')
E('s_cmp_eq_u32 s%d, 2' % sROLE)
E('s_cbranch_scc0 L_rs3')
E('v_bfe_u32 v9, v0, 1, 1')
E('v_mul_u32_u24 v9, 1280, v9')
E('v_and_b32 v10, 1, v0')
E('v_lshl_add_u32 v9, v10, 4, v9')
E('v_lshrrev_b32 v10, 2, v0')
E('v_lshl_add_u32 v9, v10, 12, v9')
E('s_lshl_b32 s6, s%d, 5' % sIDX)
E('s_add_u32 s6, s6, %d' % H_B)
E('s_mov_b32 exec_hi, 0')
E('buffer_store_dwordx4 v[12:15], v9, %s, s6 offen sc1' % srd(S_WS))
E('s_mov_b64 exec, -1')
L('L_rs3')
E('s_cmp_eq_u32 s%d, 1' % sTEAM)
E('s_cbranch_scc0 L_rs4')
E('v_lshrrev_b32 v9, 4, v0')
E('v_mul_u32_u24 v9, 1280, v9')
E('v_and_b32 v10, 15, v0')
E('v_lshl_add_u32 v9, v10, 4, v9')
E('s_mul_i32 s6, s%d, 5120' % sTIDX)
E('s_lshl_b32 s7, s%d, 8' % sKAP)
E('s_add_u32 s6, s6, s7')
E('s_add_u32 s6, s6, %d' % G_B)
E('buffer_store_dwordx4 v[12:15], v9, %s, s6 offen sc1' % srd(S_WS))
L('L_rs4')
E('s_cmp_eq_u32 s%d, 2' % sTEAM)
E('s_cbranch_scc0 L_rsdone')
E('v_lshrrev_b32 v9, 2, v0')
E('v_mul_u32_u24 v9, %d, v9' % ZS)
E('v_and_b32 v10, 3, v0')
E('v_lshl_add_u32 v9, v10, 4, v9')
E('s_lshl_b32 s6, s%d, 6' % sTIDX)
E('s_add_u32 s6, s6, %d' % Z_B)
for i in range(5):
    if i: E('s_add_u32 s6, s6, %d' % (16 * ZS))
    E('buffer_store_dwordx4 v[12:15], v9, %s, s6 offen sc1' % srd(S_WS))
L('L_rsdone')
stamp(16)
E('s_waitcnt vmcnt(24)')
stamp(17)
layernorm(4, 9, 30)
layernorm(24, 9, 30)
E('v_lshrrev_b32 v9, 4, v0')
E('v_lshlrev_b32 v9, 3, v9')
E('s_lshl_b32 s6, s%d, 5' % sR)
E('v_add_u32 v9, s6, v9')
E('v_add_u32 v10, 4, v9')
LP = [list(range(30, 40)), [12, 13, 14, 15, 16, 17, 29, 19, 2, 3]]
for bb, X in ((0, 4), (1, 24)):
    for i in range(5):
        E('ds_bpermute_b32 v%d, v9, v%d' % (LP[bb][i], X + i))
        E('ds_bpermute_b32 v%d, v10, v%d' % (LP[bb][5 + i], X + i))
E('s_waitcnt lgkmcnt(0)')
stamp(18)
E('s_waitcnt vmcnt(4)')
ACC1 = [40, 41, 42, 43, 24, 25, 26, 27]
ACC0 = [4, 5, 6, 7, 8, 9, 10, 11]
TT = [18, 22, 23, 28]
for p in range(10):
    Wa, Wb = 48 + 8 * p, 52 + 8 * p
    for d in range(4):
        t0, t1 = TT[(2 * d) % 4], TT[(2 * d + 1) % 4]
        E('v_perm_b32 v%d, v%d, v%d, s%d' % (t0, Wb + d, Wa + d, sSELLO))
        E('v_perm_b32 v%d, v%d, v%d, s%d' % (t1, Wb + d, Wa + d, sSELHI))
        for bb, ACC in ((0, ACC0), (1, ACC1)):
            if p == 0:
                E('v_dot2_f32_bf16 v%d, v%d, v%d, 0' % (ACC[2 * d], t0, LP[bb][p]))
                E('v_dot2_f32_bf16 v%d, v%d, v%d, 0' % (ACC[2 * d + 1], t1, LP[bb][p]))
            else:
                E('v_dot2c_f32_bf16 v%d, v%d, v%d' % (ACC[2 * d], t0, LP[bb][p]))
                E('v_dot2c_f32_bf16 v%d, v%d, v%d' % (ACC[2 * d + 1], t1, LP[bb][p]))
E('s_nop 2')
for i in range(4): E('v_mov_b32 v%d, v%d' % (36 + i, 24 + i))
for i in range(4): E('v_mov_b32 v%d, v%d' % (32 + i, 40 + i))
acc8_rows_reduce(4)
acc8_rows_reduce(32)
E('s_waitcnt vmcnt(0)')
E('v_readfirstlane_b32 s10, v44')
E('v_readfirstlane_b32 s11, v45')
E('s_nop 3')
E('s_cmp_eq_u64 s[10:11], 0')
E('s_cselect_b32 s10, s8, s10')
E('s_cselect_b32 s11, s9, s11')
E('v_mov_b32 v6, s10')
E('v_mov_b32 v7, s11')
E('v_mov_b32 v34, s10')
E('v_mov_b32 v35, s11')
E('v_lshlrev_b32 v2, 1, v20')
E('s_lshl_b32 s9, s%d, 14' % sH)
E('s_lshl_b32 s8, s%d, 11' % sR)
E('s_add_u32 s8, s9, s8')
E('s_add_u32 s8, s8, %d' % QP_B)
E('buffer_store_dwordx4 v[4:7], v2, %s, s8 offen sc1' % srd(S_WS))
E('buffer_store_dwordx4 v[32:35], v2, %s, s8 offen offset:1024 sc1' % srd(S_WS))
E('v_mov_b32 v3, 1')
E('s_mov_b64 exec, 1')
E('buffer_atomic_add v3, off, %s, 0 offset:128 sc1' % srd(S_DBG))
E('s_mov_b64 exec, -1')
stamp(19)
for t in range(8): kv_load('K', t, K0 + 4 * t)
E('s_lshl_b32 s7, s%d, 10' % sBb)
E('s_add_u32 s9, s9, s7')
E('s_add_u32 s9, s9, %d' % QP_B)
L('L_qpoll')
E('s_mov_b32 s7, s9')
for i in range(8):
    E('buffer_load_dwordx4 %s, v1, %s, s7 offen offset:%d sc1' % (vr(24 + 4 * i, 4), srd(S_WS), (i & 1) * 2048))
    if i & 1: E('s_add_u32 s7, s7, 4096')
E('s_waitcnt vmcnt(0)')
E('v_xor_b32 v2, s10, v26')
E('v_xor_b32 v3, s11, v27')
for i in range(1, 8):
    E('v_xor_b32 v4, s10, v%d' % (26 + 4 * i))
    E('v_xor_b32 v5, s11, v%d' % (27 + 4 * i))
    E('v_or3_b32 v2, v2, v4, v5')
E('v_or_b32 v2, v2, v3')
E('v_cmp_ne_u32 vcc, 0, v2')
E('s_cbranch_vccz L_qgo')
spin_guard('L_qgo')
E('s_branch L_qpoll')
L('L_qgo')
stamp(20)
for t in range(8, 16): kv_load('K', t, K0 + 4 * t)
for i in (0, 2, 4, 6):
    for k in range(2): E('v_add_f32 v%d, v%d, v%d' % (24 + 4 * i + k, 24 + 4 * i + k, 28 + 4 * i + k))
for i in (0, 4):
    for k in range(2): E('v_add_f32 v%d, v%d, v%d' % (24 + 4 * i + k, 24 + 4 * i + k, 32 + 4 * i + k))
for k in range(2): E('v_add_f32 v%d, v%d, v%d' % (24 + k, 24 + k, 40 + k))
E('v_cvt_pk_bf16_f32 v24, v24, v25')
E('v_lshlrev_b32 v2, 2, v0')
E('ds_write_b32 v2, v24 offset:%d' % L_QBF)
E('s_waitcnt lgkmcnt(0)')
E('s_branch L_normV')
q[:] = []
L('L_norm0')
for t in range(16):
    throttle(D); kv_load('K', t, K0 + 4 * t)
L('L_normV')
dma_block()
for t in range(10):
    throttle(D); kv_load('V', t, Vreg(t))
nk = 16; nv0 = 10
E('s_barrier')
E('v_and_b32 v19, 15, v0')
E('v_lshlrev_b32 v19, 4, v19')
E('ds_read_b128 v[2:5], v19 offset:%d' % L_QBF)
E('s_waitcnt lgkmcnt(0)')
stamp(1)

def k_batch(bt):
    ts = list(range(4 * bt, 4 * bt + 4))
    wait_for('K%d' % ts[-1])
    for t in ts: E('v_dot2_f32_bf16 v%d, v%d, v2, 0' % (Sreg(t), K0 + 4 * t))
    for d in range(1, 4):
        for t in ts: E('v_dot2c_f32_bf16 v%d, v%d, v%d' % (Sreg(t), K0 + 4 * t + d, 2 + d))
    for step in BFLY:
        for t in ts: E('v_add_f32_dpp v%d, v%d, v%d %s%s' % (Sreg(t), Sreg(t), Sreg(t), step, DPP))
    for t in (ts[0], ts[2]):
        a, b = Sreg(t), Sreg(t + 1)
        E('v_cvt_pk_bf16_f32 v12, v%d, v%d' % (a, b))
        unpack(a, b, 12)
        E('v_mul_f32 v%d, s%d, v%d' % (a, sSCALE, a))
        E('v_mul_f32 v%d, s%d, v%d' % (b, sSCALE, b))
        E('v_cvt_pk_bf16_f32 v12, v%d, v%d' % (a, b))
        unpack(a, b, 12)

C('stream')
nv = nv0
kb = 0
def pump():
    global nk, nv
    if nk < 16:
        throttle(D); kv_load('K', nk, K0 + 4 * nk); nk += 1; return True
    if nv < 16:
        if nv >= 10 and kb <= (nv - 10) // 4: return False
        throttle(D); kv_load('V', nv, Vreg(nv)); nv += 1; return True
    return False
while nv < 16 or kb < 4:
    if kb < 4 and ('K%d' % (4 * kb + 3)) not in q and nk > 4 * kb + 3:
        k_batch(kb); kb += 1; continue
    if not pump():
        k_batch(kb); kb += 1
stamp(2)
E('s_cmp_eq_u32 s%d, 7' % sW)
E('s_cbranch_scc0 L_nocnt')
E('buffer_load_dword v23, off, %s, 0 offset:128 sc1' % srd(S_DBG))
L('L_nocnt')
C('wave max / exp / sum')
E('v_max3_f32 v12, v%d, v%d, v%d' % (Sreg(0), Sreg(1), Sreg(2)))
for t in range(3, 15, 2): E('v_max3_f32 v12, v12, v%d, v%d' % (Sreg(t), Sreg(t + 1)))
E('v_max_f32 v12, v12, v%d' % Sreg(15))
rows_allreduce(12, 13, 'max')
E('v_mul_f32 v13, s%d, v12' % sLOG2E)
for t in range(16): E('v_fma_f32 v%d, v%d, s%d, -v13' % (Sreg(t), Sreg(t), sLOG2E))
for t in range(16): E('v_exp_f32 v%d, v%d' % (Sreg(t), Sreg(t)))
E('s_nop 0')
E('v_add_f32 v14, v%d, v%d' % (Sreg(0), Sreg(1)))
E('v_add_f32 v15, v%d, v%d' % (Sreg(2), Sreg(3)))
for t in range(4, 16, 2):
    E('v_add_f32 v14, v14, v%d' % Sreg(t))
    E('v_add_f32 v15, v15, v%d' % Sreg(t + 1))
E('v_add_f32 v13, v14, v15')
rows_allreduce(13, 14, 'add')
E('s_lshl_b32 s6, s%d, 3' % sW)
E('v_mov_b32 v14, s6')
E('s_mov_b64 exec, 1')
E('ds_write_b64 v14, v[12:13] offset:%d' % L_ML)
E('s_mov_b64 exec, -1')
for i in range(8): E('v_cvt_pk_bf16_f32 v%d, v%d, v%d' % (2 + i, Sreg(2 * i), Sreg(2 * i + 1)))
stamp(3)
C('V phase')
for p in range(8):
    wait_for('V%d' % (2 * p + 1))
    pair_gemv(Vreg(2 * p), Vreg(2 * p + 1), 2 + p, 10, 124, first=(p == 0))
acc8_rows_reduce(10)
E('ds_write_b64 v21, v[10:11] offset:%d' % L_QP)
E('s_cmp_eq_u32 s%d, 7' % sW)
E('s_cbranch_scc0 L_ccd')
E('s_waitcnt vmcnt(0)')
L('L_cc')
E('v_readfirstlane_b32 s6, v23')
E('s_cmp_ge_u32 s6, 256')
E('s_cbranch_scc1 L_ccd')
spin_guard('L_ccd')
E('s_sleep 16')
E('buffer_load_dword v23, off, %s, 0 offset:128 sc1' % srd(S_DBG))
E('s_waitcnt vmcnt(0)')
E('s_branch L_cc')
L('L_ccd')
E('s_waitcnt lgkmcnt(0)')
E('s_barrier')
stamp(4)
E('s_cmp_eq_u32 s%d, 0' % sW)
E('s_cbranch_scc0 L_t1')
C('wave 0: publish O partial')
E('v_and_b32 v14, 15, v0')
E('v_lshlrev_b32 v14, 3, v14')
E('ds_read_b64 v[16:17], v14 offset:%d' % L_ML)
E('v_and_b32 v2, 31, v0')
E('v_lshlrev_b32 v2, 4, v2')
E('v_lshrrev_b32 v3, 5, v0')
E('v_lshl_add_u32 v4, v3, 12, v2')
for i in range(8): E('ds_read_b128 %s, v4 offset:%d' % (vr(24 + 4 * i, 4), L_QP + i * 512))
E('s_waitcnt lgkmcnt(8)')
E('v_mov_b32 v19, v16')
row_allreduce(19, 'max')
E('v_sub_f32 v16, v16, v19')
E('v_mul_f32 v16, s%d, v16' % sLOG2E)
E('v_exp_f32 v16, v16')
E('s_nop 0')
E('v_mul_f32 v20, v16, v17')
row_allreduce(20, 'add')
E('v_mov_b32 v17, v16')
E('s_nop 1')
E('v_mov_b32_dpp v17, v16 row_ror:8 row_mask:0xc bank_mask:0xf')
E('s_nop 1')
for i in range(8): E('v_mov_b32_dpp v%d, v17 row_newbcast:%d%s' % (56 + i, i, DPP))
E('s_waitcnt lgkmcnt(0)')
for k in range(4): E('v_mul_f32 v%d, v%d, v56' % (24 + k, 24 + k))
for i in range(1, 8):
    for k in range(4): E('v_fmac_f32 v%d, v%d, v%d' % (24 + k, 24 + 4 * i + k, 56 + i))
half_combine(24)
E('v_lshl_add_u32 v2, v3, 3, v2')
E('s_lshl_b32 s6, s%d, 12' % sH)
E('s_lshl_b32 s7, s%d, 9' % sR)
E('s_add_u32 s6, s6, s7')
E('s_add_u32 s6, s6, %d' % O_B)
E('buffer_store_dwordx2 v[24:25], v2, %s, s6 offen sc1' % srd(S_WS))
E('v_mov_b32 v16, v19')
E('v_mov_b32 v17, v20')
E('s_lshl_b32 s6, s%d, 5' % sBH)
E('s_lshl_b32 s7, s%d, 3' % sQT)
E('s_add_u32 s6, s6, s7')
E('s_add_u32 s6, s6, %d' % ML_B)
E('s_mov_b64 exec, 1')
E('buffer_store_dwordx2 v[16:17], v1, %s, s6 offen sc1' % srd(S_WS))
stamp(5)
dbgstamp(6)
E('s_endpgm')


SLP = int(OPT.get('slp', 0))
def masked_poll(tag, loads, tmp):
    for i in range(len(loads)): E('s_mov_b64 s[%d:%d], -1' % (16 + 2 * i, 17 + 2 * i))
    L('L_%spoll' % tag)
    for i, (d, n, va, sr, so, im) in enumerate(loads):
        E('s_mov_b64 exec, s[%d:%d]' % (16 + 2 * i, 17 + 2 * i))
        E('s_cbranch_execz L_%ssk%d' % (tag, i))
        op = {1: 'dword', 2: 'dwordx2', 4: 'dwordx4'}[n]
        E('buffer_load_%s %s, v%d, %s, s%d offen offset:%d sc1' % (op, vr(d, n) if n > 1 else 'v%d' % d, va, srd(sr), so, im))
        L('L_%ssk%d' % (tag, i))
    E('s_mov_b64 exec, -1')
    E('s_waitcnt vmcnt(0)')
    for i, (d, n, va, sr, so, im) in enumerate(loads):
        if n == 4:
            E('v_max3_u32 v%d, v%d, v%d, v%d' % (tmp, d, d + 1, d + 2))
            E('v_max_u32 v%d, v%d, v%d' % (tmp, tmp, d + 3))
            E('v_cmp_eq_u32 s[%d:%d], -1, v%d' % (16 + 2 * i, 17 + 2 * i, tmp))
        else:
            E('v_cmp_eq_u32 s[%d:%d], -1, v%d' % (16 + 2 * i, 17 + 2 * i, d))
    E('s_mov_b64 s[4:5], s[16:17]')
    for i in range(1, len(loads)): E('s_or_b64 s[4:5], s[4:5], s[%d:%d]' % (16 + 2 * i, 17 + 2 * i))
    E('s_cmp_eq_u64 s[4:5], 0')
    E('s_cbranch_scc1 L_%sgo' % tag)
    spin_guard('L_%sgo' % tag)
    if SLP: E('s_sleep %d' % SLP)
    E('s_branch L_%spoll' % tag)
    L('L_%sgo' % tag)

L('L_t1')
E('s_cmp_eq_u32 s%d, 7' % sW)
E('s_cbranch_scc0 L_t1b')
C('wave 7: gather O partials of this head, combine, bf16 -> LDS')
E('v_lshrrev_b32 v4, 5, v0')
E('v_and_b32 v5, 31, v0')
E('v_lshlrev_b32 v6, 11, v4')
E('v_lshl_add_u32 v6, v5, 4, v6')
E('v_lshlrev_b32 v7, 10, v4')
E('s_lshl_b32 s8, s%d, 12' % sH)
E('s_add_u32 s8, s8, %d' % O_B)
E('s_lshl_b32 s9, s%d, 5' % sH)
E('s_add_u32 s9, s9, %d' % ML_B)
E('v_lshlrev_b32 v12, 8, v4')
E('v_lshl_add_u32 v12, v5, 3, v12')
masked_poll('y', [(48 + 4 * i, 4, 6, S_WS, 8, i * 512) for i in range(4)] + [(64, 4, 7, S_WS, 9, 0), (68, 4, 7, S_WS, 9, 16)], 8)
stamp(6)
E('v_max3_f32 v8, v64, v66, v68')
E('v_max_f32 v8, v8, v70')
for i in range(4):
    E('v_sub_f32 v%d, v%d, v8' % (64 + 2 * i, 64 + 2 * i))
    E('v_mul_f32 v%d, s%d, v%d' % (64 + 2 * i, sLOG2E, 64 + 2 * i))
    E('v_exp_f32 v%d, v%d' % (64 + 2 * i, 64 + 2 * i))
E('s_nop 0')
E('v_mul_f32 v9, v64, v65')
for i in range(1, 4): E('v_fmac_f32 v9, v%d, v%d' % (64 + 2 * i, 65 + 2 * i))
E('v_rcp_f32 v9, v9')
for k in range(4): E('v_mul_f32 v%d, v64, v%d' % (48 + k, 48 + k))
for i in range(1, 4):
    for k in range(4): E('v_fmac_f32 v%d, v%d, v%d' % (48 + k, 64 + 2 * i, 48 + 4 * i + k))
for k in range(4): E('v_mul_f32 v%d, v9, v%d' % (48 + k, 48 + k))
E('v_cvt_pk_bf16_f32 v10, v48, v49')
E('v_cvt_pk_bf16_f32 v11, v50, v51')
E('ds_write_b64 v12, v[10:11] offset:%d' % L_OBF)
E('s_waitcnt lgkmcnt(0)')
E('s_barrier')
E('s_endpgm')

L('L_t1b')
E('s_cmp_lt_u32 s%d, 6' % sW)
E('s_cbranch_scc0 L_t2')
C('waves 1..5: y tile')
E('s_sub_u32 s15, s%d, 1' % sW)
E('v_lshrrev_b32 v2, 4, v0')
E('v_bfe_u32 v3, v0, 2, 2')
E('v_lshl_add_u32 v3, v2, 3, v3')
E('v_mul_u32_u24 v3, 160, v3')
E('v_and_b32 v4, 3, v0')
E('v_lshl_add_u32 v3, v4, 3, v3')
E('s_lshl_b32 s6, s15, 5')
E('v_add_u32 v3, s6, v3')
for s in range(4):
    for hf in range(2):
        E('ds_read_b64_tr_b16 %s, v3 offset:%d' % (vr(32 + 4 * s + 2 * hf, 2), L_WO + s * 5120 + hf * 640))
E('v_and_b32 v13, 1, v0')
E('v_lshlrev_b32 v13, 8, v13')
E('v_lshl_add_u32 v13, v2, 4, v13')
E('s_mul_i32 s6, s%d, 5' % sR)
E('s_add_u32 s6, s6, s15')
E('s_lshl_b32 s6, s6, 12')
E('s_lshl_b32 s7, s%d, 7' % sH)
E('s_add_u32 s6, s6, s7')
E('s_add_u32 s6, s6, %d' % Y_B)
E('v_lshlrev_b32 v14, 2, v0')
E('s_waitcnt lgkmcnt(0)')
E('s_barrier')
for s in range(4): E('ds_read_b128 %s, v13 offset:%d' % (vr(72 + 4 * s, 4), L_OBF + 64 * s))
for s in range(4):
    E('s_waitcnt lgkmcnt(%d)' % (3 - s))
    E('v_mfma_f32_16x16x32_bf16 v[88:91], %s, %s, %s' % (vr(72 + 4 * s, 4), vr(32 + 4 * s, 4), '0' if s == 0 else 'v[88:91]'))
E('s_nop 7')
E('s_mov_b64 exec, 0xffff')
E('buffer_store_dword v88, v14, %s, s6 offen sc1' % srd(S_WS))
E('buffer_store_dword v89, v14, %s, s6 offen offset:64 sc1' % srd(S_WS))
stamp(7)
E('s_endpgm')

def two_val_xor16(a, b, t0, t1):
    E('v_mov_b32 v%d, v%d' % (t0, a))
    E('v_mov_b32 v%d, v%d' % (t1, b))
    E('s_nop 1')
    E('v_permlane16_swap_b32 v%d, v%d' % (a, t0))
    E('v_permlane16_swap_b32 v%d, v%d' % (b, t1))
    E('v_add_f32 v%d, v%d, v%d' % (a, a, t0))
    E('v_add_f32 v%d, v%d, v%d' % (b, b, t1))

def res_add_pack():
    E('v_cvt_pk_bf16_f32 v34, v32, v33')
    unpack(32, 33, 34)
    unpack(5, 6, 4)
    E('v_add_f32 v32, v32, v5')
    E('v_add_f32 v33, v33, v6')
    E('v_cvt_pk_bf16_f32 v34, v32, v33')

L('L_t2')
E('s_cmp_eq_u32 s%d, 6' % sW)
E('s_cbranch_scc0 L_t3')
E('s_cmp_eq_u32 s%d, 2' % sROLE)
E('s_cbranch_scc0 L_t2b')
C('wave 6: h reducer')
E('v_bfe_u32 v2, v0, 2, 1')
E('v_mul_u32_u24 v2, 1280, v2')
E('v_and_b32 v3, 3, v0')
E('v_lshl_add_u32 v2, v3, 3, v2')
E('v_lshrrev_b32 v3, 5, v0')
E('v_lshl_add_u32 v2, v3, 2, v2')
E('s_lshl_b32 s8, s%d, 5' % sIDX)
E('buffer_load_dword v4, v2, %s, s8 offen' % srd(S_X))
E('s_lshl_b32 s9, s%d, 12' % sIDX)
E('s_add_u32 s9, s9, %d' % Y_B)
E('s_add_u32 s8, s8, %d' % H_B)
E('s_barrier')
masked_poll('h', [(32 + 4 * i, 4, 1, S_WS, 9, i * 1024) for i in range(4)], 8)
stamp(8)
for k in range(4):
    E('v_add_f32 v%d, v%d, v%d' % (32 + k, 32 + k, 36 + k))
    E('v_add_f32 v%d, v%d, v%d' % (40 + k, 40 + k, 44 + k))
for k in range(4): E('v_add_f32 v%d, v%d, v%d' % (32 + k, 32 + k, 40 + k))
E('s_nop 0')
for k in range(4): E('v_add_f32_dpp v%d, v%d, v%d row_ror:8%s' % (32 + k, 32 + k, 32 + k, DPP))
half_combine(32)
two_val_xor16(32, 33, 34, 35)
res_add_pack()
E('v_mov_b32 v35, 0x7fc07fc0')
E('v_cmp_eq_u32 vcc, -1, v34')
E('v_bfe_u32 v3, v0, 3, 2')
E('v_lshl_add_u32 v2, v3, 12, v2')
E('v_cndmask_b32 v34, v34, v35, vcc')
E('s_add_u32 s9, s8, 16384')
E('buffer_store_dword v34, v2, %s, s8 offen sc1' % srd(S_WS))
E('buffer_store_dword v34, v2, %s, s9 offen sc1' % srd(S_WS))
stamp(9)
E('s_endpgm')

L('L_t2b')
E('s_cmp_eq_u32 s%d, 3' % sROLE)
E('s_cbranch_scc0 L_end')
C('wave 6: final reducer')
E('s_cmp_ge_u32 s%d, 40' % sIDX)
E('s_cselect_b32 s6, 1, 0')
E('s_mul_i32 s7, s6, 40')
E('s_sub_u32 s7, s%d, s7' % sIDX)
E('s_mul_i32 s8, s6, 1280')
E('s_lshl_b32 s7, s7, 5')
E('s_add_u32 s8, s8, s7')
E('v_and_b32 v3, 3, v0')
E('v_lshlrev_b32 v2, 3, v3')
E('v_lshrrev_b32 v3, 5, v0')
E('v_lshl_add_u32 v2, v3, 2, v2')
E('s_mul_i32 s9, s%d, %d' % (sIDX, ZS))
E('s_add_u32 s9, s9, %d' % Z_B)
E('s_add_u32 s10, s9, 4096')
E('s_lshl_b32 s11, s%d, 12' % sR)
E('s_add_u32 s11, s11, s8')
E('s_add_u32 s11, s11, %d' % H_B)
E('s_mov_b32 s%d, s38' % S_A)
E('s_mov_b32 s%d, s39' % (S_A + 1))
E('s_add_u32 s%d, s9, %d' % (S_A + 2, ZS))
E('s_mov_b32 s%d, 0x20000' % (S_A + 3))
E('s_barrier')
masked_poll('e', [(4, 1, 2, S_WS, 11, 0)], 8)
E('s_barrier')
masked_poll('f', [(32 + 4 * i, 4, 1, S_A, 9 if i < 4 else 10, (i & 3) * 1024) for i in range(7)], 8)
stamp(14)
for k in range(4):
    E('v_add_f32 v%d, v%d, v%d' % (32 + k, 32 + k, 36 + k))
    E('v_add_f32 v%d, v%d, v%d' % (40 + k, 40 + k, 44 + k))
    E('v_add_f32 v%d, v%d, v%d' % (48 + k, 48 + k, 52 + k))
for k in range(4):
    E('v_add_f32 v%d, v%d, v%d' % (32 + k, 32 + k, 40 + k))
    E('v_add_f32 v%d, v%d, v%d' % (48 + k, 48 + k, 56 + k))
for k in range(4): E('v_add_f32 v%d, v%d, v%d' % (32 + k, 32 + k, 48 + k))
E('s_nop 0')
for k in range(4): E('v_add_f32_dpp v%d, v%d, v%d row_ror:4%s' % (32 + k, 32 + k, 32 + k, DPP))
for k in range(4): E('v_add_f32_dpp v%d, v%d, v%d row_ror:8%s' % (32 + k, 32 + k, 32 + k, DPP))
half_combine(32)
two_val_xor16(32, 33, 34, 35)
res_add_pack()
E('s_mov_b32 exec_lo, 0xf')
E('s_mov_b32 exec_hi, 0xf')
E('buffer_store_dword v34, v2, %s, s8 offen' % srd(S_OUT))
stamp(15)
dbgstamp(5)
dbgstamp(6)
E('s_endpgm')

L('L_t3')
E('s_sub_u32 s15, s%d, 8' % sW)
E('v_lshrrev_b32 v2, 4, v0')
E('v_bfe_u32 v3, v0, 2, 2')
E('v_and_b32 v4, 3, v0')
E('s_cmp_eq_u32 s%d, 1' % sTEAM)
E('s_cbranch_scc0 L_t4')
C('F1 team: partial gate/up')
E('s_and_b32 s13, s15, 1')
E('s_lshr_b32 s14, s15, 1')
E('v_lshl_add_u32 v5, v2, 3, v3')
E('v_lshlrev_b32 v5, 7, v5')
E('v_lshl_add_u32 v5, v4, 3, v5')
E('s_lshl_b32 s6, s13, 14')
E('s_lshl_b32 s7, s14, 5')
E('s_add_u32 s6, s6, s7')
E('v_add_u32 v5, s6, v5')
for s in range(4):
    for hf in range(2):
        E('ds_read_b64_tr_b16 %s, v5 offset:%d' % (vr(32 + 4 * s + 2 * hf, 2), L_F + s * 4096 + hf * 512))
E('v_and_b32 v7, 1, v0')
E('v_mul_u32_u24 v8, 1280, v7')
E('v_lshl_add_u32 v8, v2, 4, v8')
E('s_lshl_b32 s7, s%d, 8' % sKAP)
E('v_add_u32 v9, s7, v8')
E('s_lshl_b32 s8, s%d, 2' % sTIDX)
E('s_add_u32 s12, s14, s8')
E('s_mul_i32 s12, s12, 1280')
E('s_add_u32 s12, s12, s7')
E('s_lshl_b32 s8, s13, 7')
E('s_add_u32 s12, s12, s8')
E('s_add_u32 s12, s12, %d' % G_B)
E('v_lshlrev_b32 v14, 2, v0')
E('v_mul_u32_u24 v7, 20, v0')
E('s_mul_i32 s8, s15, 1280')
E('s_lshl_b32 s9, s%d, 12' % sR)
E('s_add_u32 s9, s9, s8')
E('s_add_u32 s9, s9, %d' % H_B)
E('s_barrier')
E('s_cmp_lt_u32 s15, 2')
E('s_cbranch_scc0 L_nb5')
masked_poll('n', [(64, 4, 7, S_WS, 9, 0), (68, 1, 7, S_WS, 9, 16)], 8)
stamp(10)
layernorm(64, 70, 80)
E('v_add_u32 v7, s8, v7')
for i in range(5): E('ds_write_b32 v7, v%d offset:%d' % (64 + i, L_L2 + 4 * i))
L('L_nb5')
E('s_waitcnt lgkmcnt(0)')
E('s_barrier')
stamp(11)
for s in range(4): E('ds_read_b128 %s, v9 offset:%d' % (vr(64 + 4 * s, 4), L_L2 + 64 * s))
for s in range(4):
    E('s_waitcnt lgkmcnt(%d)' % (3 - s))
    E('v_mfma_f32_16x16x32_bf16 v[88:91], %s, %s, %s' % (vr(64 + 4 * s, 4), vr(32 + 4 * s, 4), '0' if s == 0 else 'v[88:91]'))
E('s_nop 7')
E('s_mov_b64 exec, 0xffff')
E('buffer_store_dword v88, v14, %s, s12 offen sc1' % srd(S_WS))
E('buffer_store_dword v89, v14, %s, s12 offen offset:64 sc1' % srd(S_WS))
stamp(23)
E('s_endpgm')

L('L_t4')
E('s_cmp_eq_u32 s%d, 2' % sTEAM)
E('s_cbranch_scc0 L_end')
C('F2 team: hm + down partial')
E('v_lshl_add_u32 v6, v2, 2, v3')
E('v_mul_u32_u24 v6, 1280, v6')
E('v_lshl_add_u32 v6, v4, 3, v6')
E('s_mul_i32 s6, s15, 160')
E('v_add_u32 v6, s6, v6')
for t in range(5): E('ds_read_b64_tr_b16 %s, v6 offset:%d' % (vr(52 + 2 * t, 2), L_F + t * 32))
E('v_and_b32 v7, 1, v0')
E('v_lshlrev_b32 v9, 6, v7')
E('v_lshl_add_u32 v9, v2, 4, v9')
E('s_mul_i32 s9, s%d, 1280' % sTIDX)
E('s_add_u32 s9, s9, %d' % G_B)
E('s_mul_i32 s6, s15, %d' % (5 * ZS))
E('s_lshl_b32 s7, s%d, 6' % sTIDX)
E('s_add_u32 s12, s6, s7')
E('s_add_u32 s12, s12, %d' % Z_B)
E('s_add_u32 s13, s12, %d' % (40 * ZS))
E('v_lshlrev_b32 v14, 2, v0')
E('v_lshlrev_b32 v15, 3, v0')
E('s_barrier')
E('s_cmp_eq_u32 s15, 0')
E('s_cbranch_scc0 L_gb')
masked_poll('g', [(64 + 4 * i, 4, 9, S_WS, 9, i * 128) for i in range(10)], 8)
stamp(24)
for m in range(2):
    base = 64 + 4 * m
    for k in range(4):
        E('v_add_f32 v%d, v%d, v%d' % (base + k, base + k, base + 8 + k))
        E('v_add_f32 v%d, v%d, v%d' % (base + 16 + k, base + 16 + k, base + 24 + k))
    for k in range(4): E('v_add_f32 v%d, v%d, v%d' % (base + k, base + k, base + 32 + k))
    for k in range(4): E('v_add_f32 v%d, v%d, v%d' % (base + k, base + k, base + 16 + k))
    for k in (0, 2):
        E('v_cvt_pk_bf16_f32 v10, v%d, v%d' % (base + k, base + k + 1))
        unpack(base + k, base + k + 1, 10)
for k in range(4): E('v_mul_f32 v%d, v%d, v%d' % (64 + k, 64 + k, 68 + k))
E('v_cvt_pk_bf16_f32 v10, v64, v65')
E('v_cvt_pk_bf16_f32 v11, v66, v67')
E('ds_write_b64 v15, v[10:11] offset:%d' % L_P)
L('L_gb')
E('s_waitcnt lgkmcnt(0)')
E('s_barrier')
E('ds_read_b64 v[10:11], v15 offset:%d' % L_P)
E('s_waitcnt lgkmcnt(0)')
for t in range(5): E('v_mfma_f32_16x16x16_bf16 %s, v[10:11], %s, 0' % (vr(104 + 4 * t, 4), vr(52 + 2 * t, 2)))
E('s_nop 7')
E('s_mov_b64 exec, 0xffff')
for t in range(5):
    E('buffer_store_dword v%d, v14, %s, s12 offen sc1' % (104 + 4 * t, srd(S_WS)))
    E('buffer_store_dword v%d, v14, %s, s13 offen sc1' % (105 + 4 * t, srd(S_WS)))
    if t < 4:
        E('s_add_u32 s12, s12, %d' % ZS)
        E('s_add_u32 s13, s13, %d' % ZS)
stamp(12)
L('L_end')
E('s_endpgm')
out.append('.section .rodata,"a"')
out.append('.p2align 6')
out.append('.amdhsa_kernel %s' % NAME)
out.append('  .amdhsa_next_free_vgpr 128')
out.append('  .amdhsa_next_free_sgpr 102')
out.append('  .amdhsa_accum_offset 128')
out.append('  .amdhsa_group_segment_fixed_size 0')
out.append('  .amdhsa_kernarg_size 96')
out.append('  .amdhsa_user_sgpr_count 2')
out.append('  .amdhsa_user_sgpr_kernarg_segment_ptr 1')
out.append('  .amdhsa_system_sgpr_workgroup_id_x 1')
out.append('  .amdhsa_float_denorm_mode_32 3')
out.append('.end_amdhsa_kernel')
print('\n'.join(out))
```

```python
import sys

NAME = 'sequential_preLN__mha_block_cached__glu_gated_bilinear__decode_kernel'
OPT = dict(a.split('=') for a in sys.argv[1:] if '=' in a)
TS = int(OPT.get('ts', 0))
def flag(k, d):
    v = OPT.get(k, d)
    return '' if v == '-' else v.replace('+', ' ')
KVFLAG = flag('kv', 'nt')
WFLAG = flag('w', 'nt')
WQFLAG = flag('wq', '-')
D = int(OPT.get('d', 6))
D1 = int(OPT.get('d1', 8))
DMAPOS = OPT.get('dma', 'end')

out = []
def E(s): out.append('  ' + s)
def L(s): out.append(s + ':')
def C(s): out.append('  ; ' + s)

ML_B = 0x0
O_B = 0x10000
Y_B = 0x40000
H_B = 0x80000
Z_B = 0x100000
ZS = 108 * 64
TS_B = 0x800000
WS_BYTES = 0x10000000
L_QP = 0x0
L_QBF = 0x2000
L_ML = 0x2100
L_OBF = 0x2200
L_L2 = 0x2C00
L_P = 0x3600
L_DUMMY = 0x3A00
L_FLAG = 0x2180
L_HM = 0x3C00
sDRY = 84
L_WO = 0x4000
L_F = 0xC000
LDS_BYTES = 0x14000
G_B = 0x300000

S_K, S_V, S_WQ, S_WS, S_X, S_A, S_B, S_DBG, S_OUT = 40, 44, 48, 52, 56, 60, 64, 68, 72
S_C = 48
sTEAM, sTIDX, sKAP = 89, 90, 97
sW, sH, sBb, sQT, sR, sKV, sROLE, sIDX, sMU, sXCD = 76, 77, 78, 79, 80, 81, 82, 83, 84, 85
sSELLO, sSELHI, sSPIN, sT2, sT3 = 86, 87, 88, 91, 92
sSCALE, sLOG2E, sBH, sWQO = 93, 94, 95, 96
sTS = 98

def srd(n): return 's[%d:%d]' % (n, n + 3)
def vr(a, n): return 'v[%d:%d]' % (a, a + n - 1)
DPP = ' row_mask:0xf bank_mask:0xf'
BFLY = ('quad_perm:[1,0,3,2]', 'quad_perm:[2,3,0,1]', 'row_half_mirror', 'row_mirror')

def stamp(idx, va=18, vd=22):
    if not TS: return
    E('s_memrealtime s[%d:%d]' % (sTS, sTS + 1))
    E('s_waitcnt lgkmcnt(0)')
    E('v_mov_b32 v%d, s%d' % (vd, sTS))
    E('s_lshl_b32 s%d, s2, 11' % sT3)
    E('s_lshl_b32 s%d, s%d, 7' % (sT2, sW))
    E('s_add_u32 s%d, s%d, s%d' % (sT3, sT3, sT2))
    E('s_add_u32 s%d, s%d, %d' % (sT3, sT3, TS_B + idx * 4))
    E('v_mov_b32 v%d, s%d' % (va, sT3))
    E('buffer_store_dword v%d, v%d, %s, 0 offen' % (vd, va, srd(S_WS)))

DBGT = int(OPT.get('dbgt', 0))
def dbgstamp(word, invert=False):
    if not DBGT: return
    E('s_memrealtime s[%d:%d]' % (sTS, sTS + 1))
    E('s_waitcnt lgkmcnt(0)')
    if invert: E('s_not_b32 s%d, s%d' % (sTS, sTS))
    E('v_mov_b32 v22, s%d' % sTS)
    E('s_mov_b64 s[100:101], exec')
    E('s_mov_b64 exec, 1')
    E('buffer_atomic_umax v22, off, %s, 0 offset:%d sc1' % (srd(S_DBG), 144 + word * 4))
    E('s_mov_b64 exec, s[100:101]')

def row_allreduce(v, op):
    for step in BFLY:
        E('s_nop 1')
        E('v_%s_f32_dpp v%d, v%d, v%d %s%s' % (op, v, v, v, step, DPP))

def rows_allreduce(v, tmp, op):
    ins = 'v_%s_f32' % op
    E('v_mov_b32 v%d, v%d' % (tmp, v))
    E('s_nop 1')
    E('v_permlane32_swap_b32 v%d, v%d' % (v, tmp))
    E('%s v%d, v%d, v%d' % (ins, v, v, tmp))
    E('v_mov_b32 v%d, v%d' % (tmp, v))
    E('s_nop 1')
    E('v_permlane16_swap_b32 v%d, v%d' % (v, tmp))
    E('%s v%d, v%d, v%d' % (ins, v, v, tmp))

def wave_allreduce(v, tmp, op):
    row_allreduce(v, op)
    rows_allreduce(v, tmp, op)

def rne_bf16(v):
    E('v_cvt_pk_bf16_f32 v%d, v%d, v%d' % (v, v, v))
    E('v_and_b32 v%d, 0xffff0000, v%d' % (v, v))

def unpack(lo, hi, src):
    E('v_lshlrev_b32 v%d, 16, v%d' % (lo, src))
    E('v_and_b32 v%d, 0xffff0000, v%d' % (hi, src))

def layernorm(X, F, T):
    for i in range(5): unpack(F + 2 * i, F + 2 * i + 1, X + i)
    E('v_add_f32 v%d, v%d, v%d' % (T, F, F + 1))
    E('v_add_f32 v%d, v%d, v%d' % (T + 1, F + 2, F + 3))
    for i in (4, 6, 8):
        E('v_add_f32 v%d, v%d, v%d' % (T, T, F + i))
        E('v_add_f32 v%d, v%d, v%d' % (T + 1, T + 1, F + i + 1))
    E('v_add_f32 v%d, v%d, v%d' % (T, T, T + 1))
    wave_allreduce(T, T + 1, 'add')
    E('v_mul_f32 v%d, 0x3acccccd, v%d' % (T, T))
    E('v_sub_f32 v%d, v%d, v%d' % (T + 2, F, T))
    E('v_mul_f32 v%d, v%d, v%d' % (T + 1, T + 2, T + 2))
    for i in range(1, 10):
        E('v_sub_f32 v%d, v%d, v%d' % (T + 2, F + i, T))
        E('v_fmac_f32 v%d, v%d, v%d' % (T + 1, T + 2, T + 2))
    wave_allreduce(T + 1, T + 2, 'add')
    E('v_mul_f32 v%d, 0x3acccccd, v%d' % (T + 1, T + 1))
    rne_bf16(T)
    rne_bf16(T + 1)
    E('v_add_f32 v%d, 0x3727c5ac, v%d' % (T + 1, T + 1))
    rne_bf16(T + 1)
    E('v_sqrt_f32 v%d, v%d' % (T + 1, T + 1))
    E('s_nop 0')
    rne_bf16(T + 1)
    E('v_rcp_f32 v%d, v%d' % (T + 2, T + 1))
    for i in range(5):
        a, b = F + 2 * i, F + 2 * i + 1
        E('v_sub_f32 v%d, v%d, v%d' % (a, a, T))
        E('v_sub_f32 v%d, v%d, v%d' % (b, b, T))
        E('v_cvt_pk_bf16_f32 v%d, v%d, v%d' % (X + i, a, b))
        unpack(a, b, X + i)
        for r in (a, b):
            E('v_mul_f32 v%d, v%d, v%d' % (T + 3, r, T + 2))
            E('v_fma_f32 v%d, -v%d, v%d, v%d' % (r, T + 3, T + 1, r))
            E('v_fma_f32 v%d, v%d, v%d, v%d' % (r, r, T + 2, T + 3))
        E('v_cvt_pk_bf16_f32 v%d, v%d, v%d' % (X + i, a, b))

def pair_gemv(Wa, Wb, Lp, ACC, T, first=False):
    for d in range(4):
        t0, t1 = T + (2 * d) % 4, T + (2 * d + 1) % 4
        E('v_perm_b32 v%d, v%d, v%d, s%d' % (t0, Wb + d, Wa + d, sSELLO))
        E('v_perm_b32 v%d, v%d, v%d, s%d' % (t1, Wb + d, Wa + d, sSELHI))
        if first:
            E('v_dot2_f32_bf16 v%d, v%d, v%d, 0' % (ACC + 2 * d, t0, Lp))
            E('v_dot2_f32_bf16 v%d, v%d, v%d, 0' % (ACC + 2 * d + 1, t1, Lp))
        else:
            E('v_dot2c_f32_bf16 v%d, v%d, v%d' % (ACC + 2 * d, t0, Lp))
            E('v_dot2c_f32_bf16 v%d, v%d, v%d' % (ACC + 2 * d + 1, t1, Lp))

def acc8_rows_reduce(A):
    E('s_nop 2')
    for i in range(4): E('v_permlane32_swap_b32 v%d, v%d' % (A + i, A + 4 + i))
    for i in range(4): E('v_add_f32 v%d, v%d, v%d' % (A + i, A + i, A + 4 + i))
    E('s_nop 0')
    E('v_permlane16_swap_b32 v%d, v%d' % (A, A + 2))
    E('v_permlane16_swap_b32 v%d, v%d' % (A + 1, A + 3))
    E('v_add_f32 v%d, v%d, v%d' % (A, A, A + 2))
    E('v_add_f32 v%d, v%d, v%d' % (A + 1, A + 1, A + 3))

def half_combine(R):
    E('s_nop 1')
    E('v_permlane32_swap_b32 v%d, v%d' % (R, R + 2))
    E('v_permlane32_swap_b32 v%d, v%d' % (R + 1, R + 3))
    E('v_add_f32 v%d, v%d, v%d' % (R, R, R + 2))
    E('v_add_f32 v%d, v%d, v%d' % (R + 1, R + 1, R + 3))

def spin_guard(label_bail):
    E('s_add_u32 s%d, s%d, 1' % (sSPIN, sSPIN))
    E('s_cmp_gt_u32 s%d, 0x200000' % sSPIN)
    E('s_cbranch_scc1 %s' % label_bail)

def build_srd(n, ptr, nbytes):
    E('s_mov_b32 s%d, s%d' % (n, ptr))
    E('s_mov_b32 s%d, s%d' % (n + 1, ptr + 1))
    E('s_mov_b32 s%d, 0x%x' % (n + 2, nbytes))
    E('s_mov_b32 s%d, 0x20000' % (n + 3))

NS = int(OPT.get('ns', 12))
POOL = 64 - 4 * NS
PREF = int(OPT.get('pref', 1))
NWK = int(OPT.get('nwk', 16 - NS))
NSTOP = int(OPT.get('nstop', NS))
QP_B = 0x200000
CNT_B = 0x280000
out.append('; @launch grid=(256,1,1) block=(1024,1,1) lds=%d' % LDS_BYTES)
out.append('.amdgcn_target "amdgcn-amd-amdhsa--gfx950"')
out.append('.text')
out.append('.globl %s' % NAME)
out.append('.p2align 8')
out.append('.type %s,@function' % NAME)
L(NAME)
E('s_cmp_ge_u32 s2, 256')
E('s_cbranch_scc1 L_end')
E('s_load_dwordx16 s[16:31], s[0:1], 0')
E('s_load_dwordx8 s[32:39], s[0:1], 64')
E('v_lshrrev_b32 v3, 6, v0')
E('v_and_b32 v0, 63, v0')
E('v_readfirstlane_b32 s%d, v3' % sW)
E('v_lshlrev_b32 v1, 4, v0')
E('s_lshr_b32 s%d, s2, 3' % sH)
E('s_add_u32 s%d, s2, s%d' % (sR, sH))
E('s_and_b32 s%d, s%d, 7' % (sR, sR))
E('s_lshr_b32 s%d, s%d, 2' % (sBb, sR))
E('s_and_b32 s%d, s%d, 3' % (sQT, sR))
E('s_lshl_b32 s%d, s%d, 5' % (sBH, sBb))
E('s_add_u32 s%d, s%d, s%d' % (sBH, sBH, sH))
E('s_mul_i32 s6, s%d, %d' % (sQT, NS))
E('s_add_u32 s6, s6, s%d' % sW)
E('s_sub_u32 s6, s6, 1')
E('s_lshl_b32 s6, s6, 14')
E('s_lshl_b32 s%d, s%d, 20' % (sKV, sBH))
E('s_add_u32 s%d, s%d, s6' % (sKV, sKV))
E('s_mov_b32 s%d, 0' % sTEAM)
E('s_mul_i32 s6, s2, 52429')
E('s_lshr_b32 s%d, s6, 18' % sTIDX)
E('s_mul_i32 s6, s%d, 5' % sTIDX)
E('s_sub_u32 s%d, s2, s6' % sKAP)
E('s_cmp_lt_u32 s2, 135')
E('s_cselect_b32 s%d, 1, 0' % sTEAM)
E('s_cbranch_scc1 L_role1')
E('s_sub_u32 s%d, s2, 135' % sTIDX)
E('s_cmp_lt_u32 s2, 243')
E('s_cselect_b32 s%d, 2, 0' % sTEAM)
L('L_role1')
E('s_mov_b32 s%d, 0' % sROLE)
E('s_sub_u32 s%d, s2, 136' % sIDX)
E('s_cmp_lt_u32 s2, 136')
E('s_cbranch_scc1 L_roledone')
E('s_cmp_lt_u32 s2, 216')
E('s_cselect_b32 s%d, 3, 0' % sROLE)
L('L_roledone')
E('s_mov_b32 s%d, 0x05040100' % sSELLO)
E('s_mov_b32 s%d, 0x07060302' % sSELHI)
E('s_mov_b32 s%d, 0x3db504f3' % sSCALE)
E('s_mov_b32 s%d, 0x3fb8aa3b' % sLOG2E)
E('s_mov_b32 s%d, 0' % sSPIN)
E('s_add_u32 s3, s%d, s%d' % (sH, sW))
E('s_lshl_b32 s3, s3, 10')
E('s_lshl_b32 s%d, s%d, 7' % (sWQO, sBH))
E('s_add_u32 s%d, s%d, %d' % (sWQO, sWQO, CNT_B))
E('v_and_b32 v19, 15, v0')
E('v_lshlrev_b32 v19, 5, v19')
E('v_lshrrev_b32 v20, 4, v0')
E('v_lshl_add_u32 v20, v20, 3, v19')
E('s_lshl_b32 s6, s%d, 9' % sW)
E('v_add_u32 v21, s6, v20')
E('s_waitcnt lgkmcnt(0)')
build_srd(S_X, 16, 2560)
build_srd(S_K, 18, 0x4000000)
build_srd(S_V, 20, 0x4000000)
build_srd(S_WQ, 22, 640 * 8192)
build_srd(S_WS, 38, WS_BYTES)
build_srd(S_DBG, 36, 256)
build_srd(S_OUT, 34, 2560)
stamp(0)

WQ0, K0 = 24, 64
q = []
def issue(name, text):
    q.append(name); E(text)
def wait_for(name):
    if name not in q: return
    i = q.index(name)
    E('s_waitcnt vmcnt(%d)' % (len(q) - 1 - i))
    del q[:i + 1]
def kv_load(which, t, reg):
    E('s_add_u32 s6, s3, %d' % (t * 1024))
    E('s_and_b32 s6, s6, 0x3fff')
    E('s_add_u32 s6, s6, s%d' % sKV)
    issue('%s%d' % (which, t), 'buffer_load_dwordx4 %s, v1, %s, s6 offen %s' % (vr(reg, 4), srd(S_K if which == 'K' else S_V), KVFLAG))
def Sreg(t): return K0 + 4 * t if t < 10 else K0 + 4 * (t - 10) + 1
def Vreg(t): return WQ0 + 4 * t if t < 10 else K0 + 4 * t

E('s_cmp_eq_u32 s%d, 0' % sW)
E('s_cbranch_scc0 L_norm0')
C('service wave: nonce, resets, q partial over 80 wq rows (both b), q gather')
dbgstamp(4, True)
E('s_setprio 3')
E('v_mov_b32 v9, 0')
E('ds_write_b32 v9, v9 offset:%d' % L_FLAG)
E('s_memrealtime s[8:9]')
E('v_mul_u32_u24 v3, 20, v0')
E('buffer_load_dwordx4 v[4:7], v3, %s, 0 offen' % srd(S_X))
E('buffer_load_dword v8, v3, %s, 0 offen offset:16' % srd(S_X))
E('buffer_load_dwordx4 v[24:27], v3, %s, 0 offen offset:1280' % srd(S_X))
E('buffer_load_dword v28, v3, %s, 0 offen offset:1296' % srd(S_X))
E('v_lshrrev_b32 v9, 4, v0')
E('v_and_b32 v10, 15, v0')
E('s_mov_b32 s6, %d' % (20 * 8192))
E('v_mul_lo_u32 v2, v9, s6')
E('v_lshl_add_u32 v2, v10, 4, v2')
E('s_mul_i32 s7, s%d, %d' % (sR, 80 * 8192))
E('s_lshl_b32 s6, s%d, 8' % sH)
E('s_add_u32 s7, s7, s6')
for t in range(20):
    if t: E('s_add_u32 s7, s7, 8192')
    E('buffer_load_dwordx4 %s, v2, %s, s7 offen %s' % (vr(48 + 4 * t, 4), srd(S_WQ), WQFLAG))
E('s_waitcnt lgkmcnt(0)')
E('s_lshl_b64 s[8:9], s[8:9], 8')
E('s_or_b32 s9, s9, 0x80000000')
E('v_mov_b32 v44, s8')
E('v_mov_b32 v45, s9')
E('v_mov_b32 v46, 0')
E('v_mov_b32 v47, 0')
for r in (12, 13, 14, 15): E('v_mov_b32 v%d, -1' % r)
E('s_lshl_b32 s12, s%d, 3' % sH)
E('s_mov_b64 exec, 1')
E('buffer_atomic_cmpswap_x2 v[44:47], off, %s, s12 sc0 sc1' % srd(S_DBG))
C('sentinel resets for every slot this WG will write (data v[12:15] = -1)')
E('s_lshl_b32 s6, s%d, 7' % sH)
E('s_lshl_b32 s7, s%d, 3' % sR)
E('s_add_u32 s6, s6, s7')
E('s_add_u32 s6, s6, %d' % ML_B)
E('buffer_store_dwordx2 v[12:13], v1, %s, s6 offen sc1' % srd(S_WS))
E('s_cmp_eq_u32 s%d, 0' % sQT)
E('s_cbranch_scc0 L_rs2')
E('v_mov_b32 v9, 0')
E('buffer_store_dword v9, off, %s, s%d sc1' % (srd(S_WS), sWQO))
L('L_rs2')
E('s_lshl_b32 s6, s%d, 12' % sH)
E('s_lshl_b32 s7, s%d, 9' % sR)
E('s_add_u32 s6, s6, s7')
E('s_add_u32 s6, s6, %d' % O_B)
E('s_mov_b32 exec_lo, -1')
E('buffer_store_dwordx4 v[12:15], v1, %s, s6 offen sc1' % srd(S_WS))
E('s_mov_b64 exec, -1')
E('s_cmp_lt_u32 s%d, 5' % sR)
E('s_cbranch_scc0 L_rs3')
E('v_lshrrev_b32 v9, 3, v0')
E('v_lshlrev_b32 v9, 12, v9')
E('v_and_b32 v10, 7, v0')
E('v_lshl_add_u32 v9, v10, 4, v9')
E('s_lshl_b32 s6, s%d, 15' % sR)
E('s_lshl_b32 s7, s%d, 7' % sH)
E('s_add_u32 s6, s6, s7')
E('s_add_u32 s6, s6, %d' % Y_B)
E('buffer_store_dwordx4 v[12:15], v9, %s, s6 offen sc1' % srd(S_WS))
L('L_rs3')
E('s_cmp_eq_u32 s%d, 1' % sTEAM)
E('s_cbranch_scc0 L_rs4')
E('v_lshrrev_b32 v9, 5, v0')
E('v_mul_u32_u24 v9, 2560, v9')
E('v_and_b32 v10, 31, v0')
E('v_lshl_add_u32 v9, v10, 4, v9')
E('s_mul_i32 s6, s%d, 10240' % sTIDX)
E('s_lshl_b32 s7, s%d, 9' % sKAP)
E('s_add_u32 s6, s6, s7')
E('s_add_u32 s6, s6, %d' % G_B)
E('s_add_u32 s7, s6, 5120')
E('buffer_store_dwordx4 v[12:15], v9, %s, s6 offen sc1' % srd(S_WS))
E('buffer_store_dwordx4 v[12:15], v9, %s, s7 offen sc1' % srd(S_WS))
L('L_rs4')
E('s_cmp_eq_u32 s%d, 2' % sTEAM)
E('s_cbranch_scc0 L_rsdone')
E('v_lshrrev_b32 v9, 2, v0')
E('v_mul_u32_u24 v9, %d, v9' % ZS)
E('v_and_b32 v10, 3, v0')
E('v_lshl_add_u32 v9, v10, 4, v9')
E('s_lshl_b32 s6, s%d, 6' % sTIDX)
E('s_add_u32 s6, s6, %d' % Z_B)
for i in range(5):
    if i: E('s_add_u32 s6, s6, %d' % (16 * ZS))
    E('buffer_store_dwordx4 v[12:15], v9, %s, s6 offen sc1' % srd(S_WS))
L('L_rsdone')
E('s_waitcnt lgkmcnt(0)')
E('s_barrier')
stamp(16)
E('s_waitcnt vmcnt(23)')
stamp(17)
layernorm(4, 9, 30)
layernorm(24, 9, 30)
E('v_lshrrev_b32 v9, 4, v0')
E('v_lshlrev_b32 v9, 3, v9')
E('s_lshl_b32 s6, s%d, 5' % sR)
E('v_add_u32 v9, s6, v9')
E('v_add_u32 v10, 4, v9')
LP = [list(range(30, 40)), [12, 13, 14, 15, 16, 17, 29, 19, 2, 3]]
for bb, X in ((0, 4), (1, 24)):
    for i in range(5):
        E('ds_bpermute_b32 v%d, v9, v%d' % (LP[bb][i], X + i))
        E('ds_bpermute_b32 v%d, v10, v%d' % (LP[bb][5 + i], X + i))
E('s_waitcnt lgkmcnt(0)')
stamp(18)
E('s_waitcnt vmcnt(3)')
ACC1 = [40, 41, 42, 43, 24, 25, 26, 27]
ACC0 = [4, 5, 6, 7, 8, 9, 10, 11]
TT = [18, 22, 23, 28]
for p in range(10):
    Wa, Wb = 48 + 8 * p, 52 + 8 * p
    for d in range(4):
        t0, t1 = TT[(2 * d) % 4], TT[(2 * d + 1) % 4]
        E('v_perm_b32 v%d, v%d, v%d, s%d' % (t0, Wb + d, Wa + d, sSELLO))
        E('v_perm_b32 v%d, v%d, v%d, s%d' % (t1, Wb + d, Wa + d, sSELHI))
        for bb, ACC in ((0, ACC0), (1, ACC1)):
            if p == 0:
                E('v_dot2_f32_bf16 v%d, v%d, v%d, 0' % (ACC[2 * d], t0, LP[bb][p]))
                E('v_dot2_f32_bf16 v%d, v%d, v%d, 0' % (ACC[2 * d + 1], t1, LP[bb][p]))
            else:
                E('v_dot2c_f32_bf16 v%d, v%d, v%d' % (ACC[2 * d], t0, LP[bb][p]))
                E('v_dot2c_f32_bf16 v%d, v%d, v%d' % (ACC[2 * d + 1], t1, LP[bb][p]))
E('s_nop 2')
for i in range(4): E('v_mov_b32 v%d, v%d' % (36 + i, 24 + i))
for i in range(4): E('v_mov_b32 v%d, v%d' % (32 + i, 40 + i))
acc8_rows_reduce(4)
acc8_rows_reduce(32)
E('s_waitcnt vmcnt(0)')
E('v_readfirstlane_b32 s10, v44')
E('v_readfirstlane_b32 s11, v45')
E('s_nop 3')
E('s_cmp_eq_u64 s[10:11], 0')
E('s_cselect_b32 s10, s8, s10')
E('s_cselect_b32 s11, s9, s11')
E('s_and_b32 s10, s10, 0xffffff00')
E('v_mov_b32 v6, s10')
E('v_mov_b32 v7, s11')
E('v_mov_b32 v34, s10')
E('v_mov_b32 v35, s11')
E('v_lshlrev_b32 v2, 1, v20')
E('s_lshl_b32 s9, s%d, 14' % sH)
E('s_lshl_b32 s8, s%d, 11' % sR)
E('s_add_u32 s8, s9, s8')
E('s_add_u32 s8, s8, %d' % QP_B)
E('buffer_store_dwordx4 v[4:7], v2, %s, s8 offen sc1' % srd(S_WS))
E('buffer_store_dwordx4 v[32:35], v2, %s, s8 offen offset:1024 sc1' % srd(S_WS))
E('v_mov_b32 v3, 1')
E('s_mov_b64 exec, 1')
E('buffer_atomic_add v3, off, %s, s12 sc1' % srd(S_DBG))
E('s_mov_b64 exec, -1')
stamp(19)
E('s_lshl_b32 s7, s%d, 10' % sBb)
E('s_add_u32 s9, s9, s7')
E('s_add_u32 s9, s9, %d' % QP_B)
L('L_qpoll')
E('s_mov_b32 s7, s9')
for i in range(8):
    E('buffer_load_dwordx4 %s, v1, %s, s7 offen offset:%d sc1' % (vr(24 + 4 * i, 4), srd(S_WS), (i & 1) * 2048))
    if i & 1: E('s_add_u32 s7, s7, 4096')
E('s_waitcnt vmcnt(0)')
E('v_xor_b32 v2, s10, v26')
E('v_xor_b32 v3, s11, v27')
for i in range(1, 8):
    E('v_xor_b32 v4, s10, v%d' % (26 + 4 * i))
    E('v_xor_b32 v5, s11, v%d' % (27 + 4 * i))
    E('v_or3_b32 v2, v2, v4, v5')
E('v_or_b32 v2, v2, v3')
E('v_cmp_ne_u32 vcc, 0, v2')
E('s_cbranch_vccz L_qgo')
spin_guard('L_qgo')
E('s_branch L_qpoll')
L('L_qgo')
stamp(20)
for i in (0, 2, 4, 6):
    for k in range(2): E('v_add_f32 v%d, v%d, v%d' % (24 + 4 * i + k, 24 + 4 * i + k, 28 + 4 * i + k))
for i in (0, 4):
    for k in range(2): E('v_add_f32 v%d, v%d, v%d' % (24 + 4 * i + k, 24 + 4 * i + k, 32 + 4 * i + k))
for k in range(2): E('v_add_f32 v%d, v%d, v%d' % (24 + k, 24 + k, 40 + k))
E('v_cvt_pk_bf16_f32 v24, v24, v25')
E('v_lshlrev_b32 v2, 2, v0')
E('ds_write_b32 v2, v24 offset:%d' % L_QBF)
E('v_mov_b32 v2, 0')
E('v_mov_b32 v3, 1')
E('s_waitcnt lgkmcnt(0)')
E('ds_write_b32 v2, v3 offset:%d' % L_FLAG)
L('L_norm0')
E('s_setprio 1')
C('tail weight DMA: 2 wo slots + 2 ffn slots per wave')
E('s_mov_b32 s%d, s24' % S_A)
E('s_mov_b32 s%d, s25' % (S_A + 1))
E('s_cmp_lt_u32 s%d, 5' % sR)
E('s_cselect_b32 s%d, %d, 0' % (S_A + 2, 4096 * 1280))
E('s_mov_b32 s%d, 0x20000' % (S_A + 3))
E('s_lshl_b32 s10, s%d, 7' % sH)
E('s_lshl_b32 s6, s%d, 2' % sW)
E('s_add_u32 s10, s10, s6')
E('s_mul_i32 s10, s10, 1280')
E('s_lshl_b32 s7, s%d, 8' % sR)
E('s_add_u32 s10, s10, s7')
E('s_add_u32 s11, s10, %d' % (64 * 1280))
E('v_lshrrev_b32 v14, 4, v0')
E('v_mul_u32_u24 v14, 1280, v14')
E('v_and_b32 v15, 15, v0')
E('v_lshl_add_u32 v14, v15, 4, v14')
E('s_lshl_b32 s8, s%d, 10' % sW)
E('s_add_u32 s9, s8, %d' % L_WO)
E('s_mov_b32 m0, s9')
E('s_add_u32 s9, s9, 16384')
E('buffer_load_dwordx4 v14, %s, s10 offen %s lds' % (srd(S_A), WFLAG))
E('s_mov_b32 m0, s9')
build_srd(S_B, 28, 0)
build_srd(S_C, 30, 0)
E('buffer_load_dwordx4 v14, %s, s11 offen %s lds' % (srd(S_A), WFLAG))
E('s_mov_b32 s10, 0')
E('s_mov_b32 s11, 0')
E('v_mov_b32 v16, v1')
E('s_cmp_eq_u32 s%d, 1' % sTEAM)
E('s_cbranch_scc0 L_dma2')
E('s_mov_b32 s%d, %d' % (S_B + 2, 640 * 3456))
E('s_mov_b32 s%d, %d' % (S_C + 2, 640 * 3456))
E('v_lshrrev_b32 v16, 3, v0')
E('v_mul_u32_u24 v16, 3456, v16')
E('v_and_b32 v17, 7, v0')
E('v_lshl_add_u32 v16, v17, 4, v16')
E('s_lshl_b32 s6, s%d, 7' % sKAP)
E('s_lshl_b32 s7, s%d, 3' % sW)
E('s_add_u32 s6, s6, s7')
E('s_mul_i32 s10, s6, 3456')
E('s_lshl_b32 s7, s%d, 7' % sTIDX)
E('s_add_u32 s10, s10, s7')
E('s_mov_b32 s11, s10')
E('s_branch L_dma3')
L('L_dma2')
E('s_cmp_eq_u32 s%d, 2' % sTEAM)
E('s_cbranch_scc0 L_dma3')
E('s_mov_b32 s%d, s32' % S_B)
E('s_mov_b32 s%d, s33' % (S_B + 1))
E('s_mov_b32 s%d, s32' % S_C)
E('s_mov_b32 s%d, s33' % (S_C + 1))
E('s_mul_i32 s10, s%d, 20480' % sTIDX)
E('s_add_u32 s%d, s10, 20480' % (S_B + 2))
E('s_add_u32 s%d, s10, 20480' % (S_C + 2))
E('s_add_u32 s10, s10, s8')
E('s_add_u32 s11, s10, 16384')
L('L_dma3')
E('s_add_u32 s9, s8, %d' % L_F)
E('s_mov_b32 m0, s9')
E('s_add_u32 s9, s9, 16384')
E('buffer_load_dwordx4 v16, %s, s10 offen %s lds' % (srd(S_B), WFLAG))
E('s_mov_b32 m0, s9')
E('s_nop 0')
E('buffer_load_dwordx4 v16, %s, s11 offen %s lds' % (srd(S_C), WFLAG))
for k in range(8): E('v_mov_b32 v%d, 0' % (10 + k))
E('v_mov_b32 v19, 0xff61b1e6')
E('v_mov_b32 v20, 0')
E('s_cmp_eq_u32 s%d, 0' % sW)
E('s_cbranch_scc1 L_claim0')
E('s_barrier')
E('s_cmp_gt_u32 s%d, %d' % (sW, 16 - NWK))
E('s_cbranch_scc1 L_claim0')
E('s_cmp_gt_u32 s%d, %d' % (sW, NS))
E('s_cbranch_scc1 L_idle')

def qwait(tag):
    E('v_mov_b32 v6, 0')
    L('L_qwait%s' % tag)
    E('ds_read_b32 v2, v6 offset:%d' % L_FLAG)
    E('s_waitcnt lgkmcnt(0)')
    E('v_readfirstlane_b32 s6, v2')
    E('s_cmp_eq_u32 s6, 1')
    E('s_cbranch_scc1 L_qok%s' % tag)
    spin_guard('L_qok%s' % tag)
    E('s_sleep 2')
    E('s_branch L_qwait%s' % tag)
    L('L_qok%s' % tag)

def claim():
    E('s_setprio 0')
    E('v_mov_b32 v23, 1')
    E('s_mov_b64 exec, 1')
    issue('CLAIM', 'buffer_atomic_add v23, off, %s, s%d sc0 sc1' % (srd(S_WS), sWQO))
    E('s_mov_b64 exec, -1')

def k_batch(bt):
    ts = list(range(4 * bt, 4 * bt + 4))
    wait_for('K%d' % ts[-1])
    for t in ts: E('v_dot2_f32_bf16 v%d, v%d, v2, 0' % (Sreg(t), K0 + 4 * t))
    for d in range(1, 4):
        for t in ts: E('v_dot2c_f32_bf16 v%d, v%d, v%d' % (Sreg(t), K0 + 4 * t + d, 2 + d))
    for step in BFLY:
        for t in ts: E('v_add_f32_dpp v%d, v%d, v%d %s%s' % (Sreg(t), Sreg(t), Sreg(t), step, DPP))
    for t in (ts[0], ts[2]):
        a, b = Sreg(t), Sreg(t + 1)
        E('v_cvt_pk_bf16_f32 v6, v%d, v%d' % (a, b))
        unpack(a, b, 6)
        E('v_mul_f32 v%d, s%d, v%d' % (a, sSCALE, a))
        E('v_mul_f32 v%d, s%d, v%d' % (b, sSCALE, b))
        E('v_cvt_pk_bf16_f32 v6, v%d, v%d' % (a, b))
        unpack(a, b, 6)

def softmax_merge(n):
    C('softmax merge')
    E('v_max3_f32 v6, v%d, v%d, v%d' % (Sreg(0), Sreg(1), Sreg(2)))
    for t in range(3, n - 1, 2): E('v_max3_f32 v6, v6, v%d, v%d' % (Sreg(t), Sreg(t + 1)))
    E('v_max3_f32 v6, v6, v%d, v19' % Sreg(n - 1))
    rows_allreduce(6, 7, 'max')
    E('v_sub_f32 v8, v19, v6')
    E('v_mul_f32 v8, s%d, v8' % sLOG2E)
    E('v_exp_f32 v8, v8')
    E('v_mul_f32 v7, s%d, v6' % sLOG2E)
    E('v_mov_b32 v19, v6')
    for t in range(n): E('v_fma_f32 v%d, v%d, s%d, -v7' % (Sreg(t), Sreg(t), sLOG2E))
    for t in range(n): E('v_exp_f32 v%d, v%d' % (Sreg(t), Sreg(t)))
    for k in range(8): E('v_mul_f32 v%d, v%d, v8' % (10 + k, 10 + k))
    E('v_fma_f32 v20, v20, v8, v%d' % Sreg(0))
    E('v_add_f32 v9, v%d, v%d' % (Sreg(1), Sreg(2)))
    for t in range(3, n - 1, 2):
        E('v_add_f32 v20, v20, v%d' % Sreg(t))
        E('v_add_f32 v9, v9, v%d' % Sreg(t + 1))
    E('v_add_f32 v20, v20, v%d' % Sreg(n - 1))
    E('v_add_f32 v20, v20, v9')
    for i in range(n // 2): E('v_cvt_pk_bf16_f32 v%d, v%d, v%d' % (2 + i, Sreg(2 * i), Sreg(2 * i + 1)))
def load_q():
    E('v_and_b32 v6, 15, v0')
    E('v_lshlrev_b32 v6, 4, v6')
    E('ds_read_b128 v[2:5], v6 offset:%d' % L_QBF)
    E('s_waitcnt lgkmcnt(0)')

L('L_chunk')
for t in range(16): kv_load('K', t, K0 + 4 * t)
for t in range(10): kv_load('V', t, Vreg(t))
qwait('a')
load_q()
stamp(1)
k_batch(0); k_batch(1); k_batch(2)
kv_load('V', 10, Vreg(10)); kv_load('V', 11, Vreg(11))
k_batch(3)
for t in range(12, 16): kv_load('V', t, Vreg(t))
stamp(2)
softmax_merge(16)
stamp(3)
for p in range(8):
    wait_for('V%d' % (2 * p + 1))
    pair_gemv(Vreg(2 * p), Vreg(2 * p + 1), 2 + p, 10, 64)
E('s_branch L_done')
L('L_claim0')
qwait('b')
E('s_cmp_eq_u32 s%d, 15' % sW)
E('s_cbranch_scc0 L_ccd')
C('wave 15: all WGs have finished their resets?')
E('v_and_b32 v6, 31, v0')
E('v_lshlrev_b32 v6, 3, v6')
L('L_cc')
E('buffer_load_dword v23, v6, %s, 0 offen sc1' % srd(S_DBG))
E('s_waitcnt vmcnt(0)')
E('v_and_b32 v23, 0xff, v23')
E('v_cmp_ne_u32 vcc, 8, v23')
E('s_cbranch_vccz L_ccd')
spin_guard('L_ccd')
E('s_sleep 16')
E('s_branch L_cc')
L('L_ccd')
q[:] = []
claim()
E('s_branch L_next')
L('L_small')
def kv_small(which, t, reg):
    E('s_add_u32 s6, s3, %d' % (t * 1024))
    E('s_and_b32 s6, s6, 0x1fff')
    E('s_add_u32 s6, s6, s%d' % sKV)
    issue('%s%d' % (which, t), 'buffer_load_dwordx4 %s, v1, %s, s6 offen %s' % (vr(reg, 4), srd(S_K if which == 'K' else S_V), KVFLAG))
q[:] = []
for t in range(8): kv_small('K', t, K0 + 4 * t)
for t in range(8): kv_small('V', t, Vreg(t))
if PREF: claim()
load_q()
k_batch(0); k_batch(1)
softmax_merge(8)
for p in range(4):
    wait_for('V%d' % (2 * p + 1))
    pair_gemv(Vreg(2 * p), Vreg(2 * p + 1), 2 + p, 10, 64)
if not PREF: claim()
L('L_next')
wait_for('CLAIM')
E('v_readfirstlane_b32 s6, v23')
E('s_nop 1')
E('s_cmp_lt_u32 s6, %d' % (2 * POOL))
E('s_cbranch_scc0 L_done')
E('s_add_u32 s6, s6, %d' % (8 * NS))
E('s_lshl_b32 s6, s6, 13')
E('s_lshl_b32 s%d, s%d, 20' % (sKV, sBH))
E('s_add_u32 s%d, s%d, s6' % (sKV, sKV))
E('s_branch L_small')
L('L_idle')
E('s_waitcnt vmcnt(0)')
L('L_done')
E('s_setprio 1')
rows_allreduce(20, 6, 'add')
E('s_lshl_b32 s6, s%d, 3' % sW)
E('v_mov_b32 v6, s6')
E('v_mov_b32 v8, v19')
E('v_mov_b32 v9, v20')
E('s_mov_b64 exec, 1')
E('ds_write_b64 v6, v[8:9] offset:%d' % L_ML)
E('s_mov_b64 exec, -1')
acc8_rows_reduce(10)
E('ds_write_b64 v21, v[10:11] offset:%d' % L_QP)
E('s_waitcnt lgkmcnt(0)')
E('s_barrier')
stamp(4)
E('s_cmp_eq_u32 s%d, 0' % sW)
E('s_cbranch_scc0 L_t1')
C('wave 0: publish O partial')
E('v_and_b32 v14, 15, v0')
E('v_lshlrev_b32 v14, 3, v14')
E('ds_read_b64 v[16:17], v14 offset:%d' % L_ML)
E('v_and_b32 v2, 31, v0')
E('v_lshlrev_b32 v2, 4, v2')
E('v_lshrrev_b32 v3, 5, v0')
E('v_lshl_add_u32 v4, v3, 12, v2')
for i in range(8): E('ds_read_b128 %s, v4 offset:%d' % (vr(24 + 4 * i, 4), L_QP + i * 512))
E('s_waitcnt lgkmcnt(8)')
E('v_mov_b32 v19, v16')
row_allreduce(19, 'max')
E('v_sub_f32 v16, v16, v19')
E('v_mul_f32 v16, s%d, v16' % sLOG2E)
E('v_exp_f32 v16, v16')
E('s_nop 0')
E('v_mul_f32 v20, v16, v17')
row_allreduce(20, 'add')
E('v_mov_b32 v17, v16')
E('s_nop 1')
E('v_mov_b32_dpp v17, v16 row_ror:8 row_mask:0xc bank_mask:0xf')
E('s_nop 1')
for i in range(8): E('v_mov_b32_dpp v%d, v17 row_newbcast:%d%s' % (56 + i, i, DPP))
E('s_waitcnt lgkmcnt(0)')
for k in range(4): E('v_mul_f32 v%d, v%d, v56' % (24 + k, 24 + k))
for i in range(1, 8):
    for k in range(4): E('v_fmac_f32 v%d, v%d, v%d' % (24 + k, 24 + 4 * i + k, 56 + i))
half_combine(24)
E('v_lshl_add_u32 v2, v3, 3, v2')
E('s_lshl_b32 s6, s%d, 12' % sH)
E('s_lshl_b32 s7, s%d, 9' % sR)
E('s_add_u32 s6, s6, s7')
E('s_add_u32 s6, s6, %d' % O_B)
E('buffer_store_dwordx2 v[24:25], v2, %s, s6 offen sc1' % srd(S_WS))
E('v_mov_b32 v16, v19')
E('v_mov_b32 v17, v20')
E('s_lshl_b32 s6, s%d, 7' % sH)
E('s_lshl_b32 s7, s%d, 3' % sR)
E('s_add_u32 s6, s6, s7')
E('s_add_u32 s6, s6, %d' % ML_B)
E('s_mov_b64 exec, 1')
E('buffer_store_dwordx2 v[16:17], v1, %s, s6 offen sc1' % srd(S_WS))
stamp(5)
dbgstamp(6)
E('s_endpgm')


SLP = int(OPT.get('slp', 0))
DRY = int(OPT.get('dry', 1))
def masked_poll(tag, loads, tmp, thr=None, slp=0):
    for i in range(len(loads)): E('s_mov_b64 s[%d:%d], -1' % (16 + 2 * i, 17 + 2 * i))
    L('L_%spoll' % tag)
    for i, (d, n, va, sr, so, im) in enumerate(loads):
        E('s_mov_b64 exec, s[%d:%d]' % (16 + 2 * i, 17 + 2 * i))
        E('s_cbranch_execz L_%ssk%d' % (tag, i))
        op = {1: 'dword', 2: 'dwordx2', 4: 'dwordx4'}[n]
        E('buffer_load_%s %s, v%d, %s, s%d offen offset:%d sc1' % (op, vr(d, n) if n > 1 else 'v%d' % d, va, srd(sr), so, im))
        L('L_%ssk%d' % (tag, i))
    E('s_mov_b64 exec, -1')
    E('s_waitcnt vmcnt(0)')
    for i, (d, n, va, sr, so, im) in enumerate(loads):
        if n == 4:
            E('v_max3_u32 v%d, v%d, v%d, v%d' % (tmp, d, d + 1, d + 2))
            E('v_max_u32 v%d, v%d, v%d' % (tmp, tmp, d + 3))
            E('v_cmp_eq_u32 s[%d:%d], -1, v%d' % (16 + 2 * i, 17 + 2 * i, tmp))
        else:
            E('v_cmp_eq_u32 s[%d:%d], -1, v%d' % (16 + 2 * i, 17 + 2 * i, d))
    E('s_mov_b64 s[4:5], s[16:17]')
    for i in range(1, len(loads)): E('s_or_b64 s[4:5], s[4:5], s[%d:%d]' % (16 + 2 * i, 17 + 2 * i))
    E('s_cmp_eq_u64 s[4:5], 0')
    E('s_cbranch_scc1 L_%sgo' % tag)
    spin_guard('L_%sgo' % tag)
    if thr is not None:
        E('s_bcnt1_i32_b64 s4, s[16:17]')
        for i in range(1, len(loads)):
            E('s_bcnt1_i32_b64 s5, s[%d:%d]' % (16 + 2 * i, 17 + 2 * i))
            E('s_add_u32 s4, s4, s5')
        E('s_cmp_le_u32 s4, %d' % thr)
        E('s_cbranch_scc1 L_%spoll' % tag)
        E('s_sleep %d' % slp)
    E('s_branch L_%spoll' % tag)
    L('L_%sgo' % tag)

L('L_t1')
E('s_cmp_eq_u32 s%d, 7' % sW)
E('s_cbranch_scc0 L_t1b')
C('wave 7: gather O partials of this head, combine, bf16 -> LDS')
E('v_lshrrev_b32 v4, 5, v0')
E('v_and_b32 v5, 31, v0')
E('v_lshlrev_b32 v6, 11, v4')
E('v_lshl_add_u32 v6, v5, 4, v6')
E('v_lshlrev_b32 v7, 5, v4')
E('s_lshl_b32 s8, s%d, 12' % sH)
E('s_add_u32 s8, s8, %d' % O_B)
E('s_lshl_b32 s9, s%d, 7' % sH)
E('s_add_u32 s9, s9, %d' % ML_B)
E('v_lshlrev_b32 v12, 8, v4')
E('v_lshl_add_u32 v12, v5, 3, v12')
masked_poll('y', [(48 + 4 * i, 4, 6, S_WS, 8, i * 512) for i in range(4)] + [(64, 4, 7, S_WS, 9, 0), (68, 4, 7, S_WS, 9, 16)], 8)
stamp(6)
E('v_max3_f32 v8, v64, v66, v68')
E('v_max_f32 v8, v8, v70')
for i in range(4):
    E('v_sub_f32 v%d, v%d, v8' % (64 + 2 * i, 64 + 2 * i))
    E('v_mul_f32 v%d, s%d, v%d' % (64 + 2 * i, sLOG2E, 64 + 2 * i))
    E('v_exp_f32 v%d, v%d' % (64 + 2 * i, 64 + 2 * i))
E('s_nop 0')
E('v_mul_f32 v9, v64, v65')
for i in range(1, 4): E('v_fmac_f32 v9, v%d, v%d' % (64 + 2 * i, 65 + 2 * i))
E('v_rcp_f32 v9, v9')
for k in range(4): E('v_mul_f32 v%d, v64, v%d' % (48 + k, 48 + k))
for i in range(1, 4):
    for k in range(4): E('v_fmac_f32 v%d, v%d, v%d' % (48 + k, 64 + 2 * i, 48 + 4 * i + k))
for k in range(4): E('v_mul_f32 v%d, v9, v%d' % (48 + k, 48 + k))
E('v_cvt_pk_bf16_f32 v10, v48, v49')
E('v_cvt_pk_bf16_f32 v11, v50, v51')
E('ds_write_b64 v12, v[10:11] offset:%d' % L_OBF)
E('s_waitcnt lgkmcnt(0)')
E('s_barrier')
E('s_endpgm')

L('L_t1b')
E('s_cmp_lt_u32 s%d, 5' % sW)
E('s_cbranch_scc0 L_t2')
E('s_cmp_lt_u32 s%d, 5' % sR)
E('s_cbranch_scc0 L_end')
C('waves 1..4: two y tiles each')
E('s_sub_u32 s15, s%d, 1' % sW)
E('v_lshrrev_b32 v2, 4, v0')
E('v_bfe_u32 v3, v0, 2, 2')
E('v_lshl_add_u32 v3, v2, 3, v3')
E('v_lshlrev_b32 v3, 8, v3')
E('v_and_b32 v4, 3, v0')
E('v_lshl_add_u32 v3, v4, 3, v3')
E('s_lshl_b32 s6, s15, 6')
E('v_add_u32 v3, s6, v3')
for tl in range(2):
    for s in range(4):
        for hf in range(2):
            E('ds_read_b64_tr_b16 %s, v3 offset:%d' % (vr(32 + 16 * tl + 4 * s + 2 * hf, 2), L_WO + s * 8192 + hf * 1024 + tl * 32))
E('v_and_b32 v13, 1, v0')
E('v_lshlrev_b32 v13, 8, v13')
E('v_lshl_add_u32 v13, v2, 4, v13')
E('s_lshl_b32 s6, s%d, 15' % sR)
E('s_lshl_b32 s7, s15, 13')
E('s_add_u32 s6, s6, s7')
E('s_lshl_b32 s7, s%d, 7' % sH)
E('s_add_u32 s6, s6, s7')
E('s_add_u32 s6, s6, %d' % Y_B)
E('s_add_u32 s7, s6, 4096')
E('v_lshlrev_b32 v14, 2, v0')
E('s_waitcnt lgkmcnt(0)')
E('s_barrier')
for s in range(4): E('ds_read_b128 %s, v13 offset:%d' % (vr(72 + 4 * s, 4), L_OBF + 64 * s))
for s in range(4):
    E('s_waitcnt lgkmcnt(%d)' % (3 - s))
    E('v_mfma_f32_16x16x32_bf16 v[88:91], %s, %s, %s' % (vr(72 + 4 * s, 4), vr(32 + 4 * s, 4), '0' if s == 0 else 'v[88:91]'))
    E('v_mfma_f32_16x16x32_bf16 v[92:95], %s, %s, %s' % (vr(72 + 4 * s, 4), vr(48 + 4 * s, 4), '0' if s == 0 else 'v[92:95]'))
E('s_nop 6')
E('s_mov_b64 exec, 0xffff')
E('buffer_store_dword v88, v14, %s, s6 offen sc1' % srd(S_WS))
E('buffer_store_dword v89, v14, %s, s6 offen offset:64 sc1' % srd(S_WS))
E('buffer_store_dword v92, v14, %s, s7 offen sc1' % srd(S_WS))
E('buffer_store_dword v93, v14, %s, s7 offen offset:64 sc1' % srd(S_WS))
stamp(7)
E('s_endpgm')

def two_val_xor16(a, b, t0, t1):
    E('v_mov_b32 v%d, v%d' % (t0, a))
    E('v_mov_b32 v%d, v%d' % (t1, b))
    E('s_nop 1')
    E('v_permlane16_swap_b32 v%d, v%d' % (a, t0))
    E('v_permlane16_swap_b32 v%d, v%d' % (b, t1))
    E('v_add_f32 v%d, v%d, v%d' % (a, a, t0))
    E('v_add_f32 v%d, v%d, v%d' % (b, b, t1))

def res_add_pack(R, X):
    E('v_cvt_pk_bf16_f32 v%d, v%d, v%d' % (R + 2, R, R + 1))
    unpack(R, R + 1, R + 2)
    unpack(5, 6, X)
    E('v_add_f32 v%d, v%d, v5' % (R, R))
    E('v_add_f32 v%d, v%d, v6' % (R + 1, R + 1))
    E('v_cvt_pk_bf16_f32 v%d, v%d, v%d' % (R + 2, R, R + 1))

def h_slice_setup(sSIG):
    E('v_bfe_u32 v10, v0, 2, 1')
    E('v_mul_u32_u24 v10, 1280, v10')
    E('v_and_b32 v11, 3, v0')
    E('v_lshl_add_u32 v10, v11, 3, v10')
    E('v_lshrrev_b32 v11, 5, v0')
    E('v_lshl_add_u32 v10, v11, 2, v10')
    E('s_lshl_b32 s8, s%d, 5' % sSIG)
    E('buffer_load_dword v4, v10, %s, s8 offen' % srd(S_X))
    E('s_lshl_b32 s9, s%d, 12' % sSIG)
    E('s_add_u32 s9, s9, %d' % Y_B)

def h_slice(tag, R):
    masked_poll(tag, [(R + 4 * i, 4, 1, S_WS, 9, i * 1024) for i in range(4)], 8, int(OPT.get('ythr', 96)), int(OPT.get('yslp', 16)))
    stamp(8)
    for k in range(4):
        E('v_add_f32 v%d, v%d, v%d' % (R + k, R + k, R + 4 + k))
        E('v_add_f32 v%d, v%d, v%d' % (R + 8 + k, R + 8 + k, R + 12 + k))
    for k in range(4): E('v_add_f32 v%d, v%d, v%d' % (R + k, R + k, R + 8 + k))
    E('s_nop 0')
    for k in range(4): E('v_add_f32_dpp v%d, v%d, v%d row_ror:8%s' % (R + k, R + k, R + k, DPP))
    half_combine(R)
    two_val_xor16(R, R + 1, R + 2, R + 3)
    res_add_pack(R, 4)

L('L_t2')
E('s_cmp_eq_u32 s%d, 6' % sW)
E('s_cbranch_scc0 L_t3')
E('s_cmp_eq_u32 s%d, 3' % sROLE)
E('s_cbranch_scc0 L_end')
C('wave 6: final reducer')
E('s_cmp_ge_u32 s%d, 40' % sIDX)
E('s_cselect_b32 s12, 1, 0')
E('s_mul_i32 s7, s12, 40')
E('s_sub_u32 s13, s%d, s7' % sIDX)
h_slice_setup(13)
E('s_barrier')
h_slice('e', 64)
E('v_and_b32 v3, 35, v0')
E('s_lshl_b32 s6, s12, 2')
E('v_add_u32 v3, s6, v3')
E('v_lshlrev_b32 v3, 2, v3')
E('ds_bpermute_b32 v4, v3, v66')
E('s_mul_i32 s8, s12, 1280')
E('s_lshl_b32 s7, s13, 5')
E('s_add_u32 s8, s8, s7')
E('v_and_b32 v3, 3, v0')
E('v_lshlrev_b32 v2, 3, v3')
E('v_lshrrev_b32 v3, 5, v0')
E('v_lshl_add_u32 v2, v3, 2, v2')
E('s_mul_i32 s9, s%d, %d' % (sIDX, ZS))
E('s_add_u32 s9, s9, %d' % Z_B)
E('s_add_u32 s10, s9, 4096')
E('s_mov_b32 s%d, s38' % S_A)
E('s_mov_b32 s%d, s39' % (S_A + 1))
E('s_add_u32 s%d, s9, %d' % (S_A + 2, ZS))
E('s_mov_b32 s%d, 0x20000' % (S_A + 3))
E('s_waitcnt lgkmcnt(0)')
E('s_barrier')
masked_poll('f', [(32 + 4 * i, 4, 1, S_A, 9 if i < 4 else 10, (i & 3) * 1024) for i in range(7)], 8)
stamp(14)
for k in range(4):
    E('v_add_f32 v%d, v%d, v%d' % (32 + k, 32 + k, 36 + k))
    E('v_add_f32 v%d, v%d, v%d' % (40 + k, 40 + k, 44 + k))
    E('v_add_f32 v%d, v%d, v%d' % (48 + k, 48 + k, 52 + k))
for k in range(4):
    E('v_add_f32 v%d, v%d, v%d' % (32 + k, 32 + k, 40 + k))
    E('v_add_f32 v%d, v%d, v%d' % (48 + k, 48 + k, 56 + k))
for k in range(4): E('v_add_f32 v%d, v%d, v%d' % (32 + k, 32 + k, 48 + k))
E('s_nop 0')
for k in range(4): E('v_add_f32_dpp v%d, v%d, v%d row_ror:4%s' % (32 + k, 32 + k, 32 + k, DPP))
for k in range(4): E('v_add_f32_dpp v%d, v%d, v%d row_ror:8%s' % (32 + k, 32 + k, 32 + k, DPP))
half_combine(32)
two_val_xor16(32, 33, 34, 35)
res_add_pack(32, 4)
E('s_mov_b32 exec_lo, 0xf')
E('s_mov_b32 exec_hi, 0xf')
E('buffer_store_dword v34, v2, %s, s8 offen' % srd(S_OUT))
stamp(15)
E('s_endpgm')

L('L_t3')
E('s_cmp_lt_u32 s%d, 8' % sW)
E('s_cbranch_scc1 L_end')
E('s_sub_u32 s15, s%d, 8' % sW)
E('v_lshrrev_b32 v2, 4, v0')
E('v_bfe_u32 v3, v0, 2, 2')
E('v_and_b32 v7, 3, v0')
E('s_cmp_eq_u32 s%d, 1' % sTEAM)
E('s_cbranch_scc0 L_t4')
C('F1 team: h slice -> raw partial gate/up products, column sums, stats')
E('s_and_b32 s13, s15, 1')
E('s_lshr_b32 s14, s15, 1')
E('v_lshl_add_u32 v5, v2, 3, v3')
E('v_lshlrev_b32 v5, 7, v5')
E('v_lshl_add_u32 v5, v7, 3, v5')
E('s_lshl_b32 s6, s13, 14')
E('s_lshl_b32 s7, s14, 5')
E('s_add_u32 s6, s6, s7')
E('v_add_u32 v5, s6, v5')
for s in range(4):
    for hf in range(2):
        E('ds_read_b64_tr_b16 %s, v5 offset:%d' % (vr(32 + 4 * s + 2 * hf, 2), L_F + s * 4096 + hf * 512))
E('v_mov_b32 v12, 0x3f803f80')
E('v_lshlrev_b32 v13, 2, v0')
E('ds_write_b32 v13, v12 offset:%d' % (L_L2 + 512))
E('v_and_b32 v12, 15, v0')
E('v_min_u32 v12, 2, v12')
E('v_lshlrev_b32 v12, 8, v12')
E('v_lshl_add_u32 v15, v2, 4, v12')
E('s_lshl_b32 s8, s%d, 2' % sTIDX)
E('s_add_u32 s12, s14, s8')
E('s_mul_i32 s12, s12, 2560')
E('s_lshl_b32 s7, s%d, 9' % sKAP)
E('s_add_u32 s12, s12, s7')
E('s_mul_i32 s8, s13, 192')
E('s_add_u32 s12, s12, s8')
E('s_add_u32 s12, s12, %d' % G_B)
E('s_mul_i32 s11, s%d, 10240' % sTIDX)
E('s_add_u32 s11, s11, s7')
E('s_add_u32 s11, s11, %d' % (G_B + 384))
E('v_lshlrev_b32 v14, 2, v0')
E('s_lshl_b32 s10, s%d, 3' % sKAP)
E('s_add_u32 s10, s10, s15')
h_slice_setup(10)
E('v_bfe_u32 v16, v0, 2, 1')
E('v_lshlrev_b32 v16, 8, v16')
E('v_lshl_add_u32 v16, v7, 3, v16')
E('v_lshl_add_u32 v16, v11, 2, v16')
E('s_lshl_b32 s6, s15, 5')
E('v_add_u32 v16, s6, v16')
E('s_barrier')
h_slice('n', 64)
E('ds_write_b32 v16, v66 offset:%d' % L_L2)
E('s_waitcnt lgkmcnt(0)')
E('s_barrier')
stamp(11)
for s in range(4): E('ds_read_b128 %s, v15 offset:%d' % (vr(64 + 4 * s, 4), L_L2 + 64 * s))
E('v_lshlrev_b32 v17, 3, v0')
E('ds_read_b64 v[96:97], v17 offset:%d' % L_L2)
for s in range(4):
    E('s_waitcnt lgkmcnt(%d)' % (4 - s))
    E('v_mfma_f32_16x16x32_bf16 v[88:91], %s, %s, %s' % (vr(64 + 4 * s, 4), vr(32 + 4 * s, 4), '0' if s == 0 else 'v[88:91]'))
E('s_nop 7')
E('s_mov_b64 exec, 0xffff')
E('buffer_store_dword v88, v14, %s, s12 offen sc1' % srd(S_WS))
E('buffer_store_dword v89, v14, %s, s12 offen offset:64 sc1' % srd(S_WS))
E('buffer_store_dword v90, v14, %s, s12 offen offset:128 sc1' % srd(S_WS))
E('s_mov_b64 exec, -1')
stamp(23)
E('s_cmp_eq_u32 s15, 7')
E('s_cbranch_scc0 L_end')
C('stats of the 128-slice (wave u=7)')
E('s_waitcnt lgkmcnt(0)')
unpack(100, 101, 96)
unpack(102, 103, 97)
E('v_add_f32 v104, v100, v101')
E('v_add_f32 v105, v102, v103')
E('v_add_f32 v104, v104, v105')
def half_allreduce(v, t):
    row_allreduce(v, 'add')
    E('v_mov_b32 v%d, v%d' % (t, v))
    E('s_nop 1')
    E('v_permlane16_swap_b32 v%d, v%d' % (v, t))
    E('v_add_f32 v%d, v%d, v%d' % (v, v, t))
half_allreduce(104, 105)
E('v_mul_f32 v104, 0x3c000000, v104')
for k in range(4): E('v_sub_f32 v%d, v%d, v104' % (100 + k, 100 + k))
E('v_mul_f32 v105, v100, v100')
for k in range(1, 4): E('v_fmac_f32 v105, v%d, v%d' % (100 + k, 100 + k))
half_allreduce(105, 106)
E('v_mul_u32_u24 v17, 2560, v7')
E('v_lshl_add_u32 v17, v11, 3, v17')
E('s_mov_b32 exec_lo, 0xf')
E('s_mov_b32 exec_hi, 0xf')
E('buffer_store_dwordx2 v[104:105], v17, %s, s11 offen sc1' % srd(S_WS))
E('s_endpgm')

L('L_t4')
E('s_cmp_eq_u32 s%d, 2' % sTEAM)
E('s_cbranch_scc0 L_end')
C('F2 team: LN fixup, hm, down partial')
E('v_lshl_add_u32 v6, v2, 2, v3')
E('v_mul_u32_u24 v6, 1280, v6')
E('v_lshl_add_u32 v6, v7, 3, v6')
E('s_mul_i32 s6, s15, 160')
E('v_add_u32 v6, s6, v6')
for t in range(5): E('ds_read_b64_tr_b16 %s, v6 offset:%d' % (vr(52 + 2 * t, 2), L_F + t * 32))
E('s_mul_i32 s9, s%d, 2560' % sTIDX)
E('s_add_u32 s9, s9, %d' % G_B)
E('s_mul_i32 s6, s15, %d' % (5 * ZS))
E('s_lshl_b32 s7, s%d, 6' % sTIDX)
E('s_add_u32 s12, s6, s7')
E('s_add_u32 s12, s12, %d' % Z_B)
E('s_add_u32 s13, s12, %d' % (40 * ZS))
E('v_lshlrev_b32 v14, 2, v0')
E('v_lshlrev_b32 v15, 3, v0')
E('v_min_u32 v9, 24, v0')
E('v_lshlrev_b32 v9, 4, v9')
E('v_and_b32 v16, 1, v0')
E('v_lshlrev_b32 v17, 6, v16')
E('v_lshl_add_u32 v17, v2, 4, v17')
E('v_lshlrev_b32 v19, 4, v2')
E('v_lshlrev_b32 v20, 3, v16')
E('s_mov_b32 s%d, %d' % (sDRY, DRY))
E('s_cmp_eq_u32 s%d, 1' % sDRY)
E('s_cbranch_scc1 L_gdry')
L('L_greal')
E('s_barrier')
E('s_cmp_eq_u32 s15, 0')
E('s_cbranch_scc0 L_gb')
masked_poll('g', [(64 + 4 * i, 4, 9, S_WS, 9, i * 512) for i in range(5)], 8)
stamp(24)
L('L_gdry')
for k in range(4):
    E('v_add_f32 v%d, v%d, v%d' % (84 + k, 64 + k, 68 + k))
    E('v_add_f32 v%d, v%d, v%d' % (88 + k, 72 + k, 76 + k))
for k in range(4): E('v_add_f32 v%d, v%d, v%d' % (84 + k, 84 + k, 80 + k))
for k in range(4): E('v_add_f32 v%d, v%d, v%d' % (84 + k, 84 + k, 88 + k))
E('ds_write_b128 v9, v[84:87] offset:%d' % L_P)
for bb in range(2):
    m, M = 92 + 2 * bb, 93 + 2 * bb
    E('v_mul_f32 v%d, 0x3e4ccccd, v%d' % (m, 84 + 2 * bb))
    E('v_sub_f32 v88, v%d, v%d' % (64 + 2 * bb, m))
    E('v_mul_f32 v89, v88, v88')
    for i in range(1, 5):
        E('v_sub_f32 v88, v%d, v%d' % (64 + 4 * i + 2 * bb, m))
        E('v_fmac_f32 v89, v88, v88')
    E('v_mov_b32 v88, 0x43000000')
    E('v_fma_f32 v%d, v89, v88, v%d' % (M, 85 + 2 * bb))
    E('v_mul_f32 v%d, 0x3acccccd, v%d' % (M, M))
    rne_bf16(m)
    rne_bf16(M)
    E('v_add_f32 v%d, 0x3727c5ac, v%d' % (M, M))
    rne_bf16(M)
    E('v_sqrt_f32 v%d, v%d' % (M, M))
    E('s_nop 0')
    rne_bf16(M)
    E('v_rcp_f32 v%d, v%d' % (M, M))
E('s_nop 0')
E('v_mov_b32 v88, %d' % (L_P + 512))
E('s_mov_b32 exec_lo, 0x1000000')
E('s_mov_b32 exec_hi, 0')
E('ds_write_b128 v88, v[92:95]')
E('s_mov_b64 exec, -1')
E('s_waitcnt lgkmcnt(0)')
E('ds_read_b128 v[64:67], v17 offset:%d' % L_P)
E('ds_read_b128 v[68:71], v19 offset:%d' % (L_P + 128))
E('ds_read_b128 v[72:75], v17 offset:%d' % (L_P + 192))
E('ds_read_b128 v[76:79], v19 offset:%d' % (L_P + 320))
E('ds_read_b64 v[80:81], v20 offset:%d' % (L_P + 512))
E('s_waitcnt lgkmcnt(0)')
for base in (64, 72):
    for k in range(4): E('v_fma_f32 v%d, -v80, v%d, v%d' % (base + k, base + 4 + k, base + k))
    for k in range(4): E('v_mul_f32 v%d, v%d, v81' % (base + k, base + k))
    for k in (0, 2):
        E('v_cvt_pk_bf16_f32 v10, v%d, v%d' % (base + k, base + k + 1))
        unpack(base + k, base + k + 1, 10)
for k in range(4): E('v_mul_f32 v%d, v%d, v%d' % (64 + k, 64 + k, 72 + k))
E('v_cvt_pk_bf16_f32 v10, v64, v65')
E('v_cvt_pk_bf16_f32 v11, v66, v67')
E('ds_write_b64 v15, v[10:11] offset:%d' % L_HM)
L('L_gb')
E('s_waitcnt lgkmcnt(0)')
E('s_cmp_eq_u32 s%d, 1' % sDRY)
E('s_cbranch_scc1 L_gnb')
E('s_barrier')
L('L_gnb')
E('ds_read_b64 v[10:11], v15 offset:%d' % L_HM)
E('s_waitcnt lgkmcnt(0)')
for t in range(5): E('v_mfma_f32_16x16x16_bf16 %s, v[10:11], %s, 0' % (vr(104 + 4 * t, 4), vr(52 + 2 * t, 2)))
E('s_cmp_eq_u32 s%d, 1' % sDRY)
E('s_mov_b32 s%d, 0' % sDRY)
E('s_cbranch_scc1 L_greal')
E('s_nop 5')
E('s_mov_b64 exec, 0xffff')
for t in range(5):
    E('buffer_store_dword v%d, v14, %s, s12 offen sc1' % (104 + 4 * t, srd(S_WS)))
    E('buffer_store_dword v%d, v14, %s, s13 offen sc1' % (105 + 4 * t, srd(S_WS)))
    if t < 4:
        E('s_add_u32 s12, s12, %d' % ZS)
        E('s_add_u32 s13, s13, %d' % ZS)
stamp(12)
L('L_end')
E('s_endpgm')
out.append('.section .rodata,"a"')
out.append('.p2align 6')
out.append('.amdhsa_kernel %s' % NAME)
out.append('  .amdhsa_next_free_vgpr 128')
out.append('  .amdhsa_next_free_sgpr 102')
out.append('  .amdhsa_accum_offset 128')
out.append('  .amdhsa_group_segment_fixed_size 0')
out.append('  .amdhsa_kernarg_size 96')
out.append('  .amdhsa_user_sgpr_count 2')
out.append('  .amdhsa_user_sgpr_kernarg_segment_ptr 1')
out.append('  .amdhsa_system_sgpr_workgroup_id_x 1')
out.append('  .amdhsa_float_denorm_mode_32 3')
out.append('.end_amdhsa_kernel')
print('\n'.join(out))
```

```python
import sys

NAME = 'sequential_preLN__mha_block_cached__glu_gated_bilinear__decode_kernel'
OPT = dict(a.split('=') for a in sys.argv[1:] if '=' in a)
TS = int(OPT.get('ts', 0))
def flag(k, d):
    v = OPT.get(k, d)
    return '' if v == '-' else v.replace('+', ' ')
KVFLAG = flag('kv', 'nt')
WFLAG = flag('w', 'nt')
WQFLAG = flag('wq', '-')
D = int(OPT.get('d', 6))
D1 = int(OPT.get('d1', 8))
DMAPOS = OPT.get('dma', 'end')

out = []
def E(s): out.append('  ' + s)
def L(s): out.append(s + ':')
def C(s): out.append('  ; ' + s)

ML_B = 0x0
O_B = 0x10000
Y_B = 0x40000
H_B = 0x80000
Z_B = 0x100000
ZS = 108 * 64
TS_B = 0x800000
WS_BYTES = 0x10000000
L_QP = 0x0
L_QBF = 0x2000
L_ML = 0x2100
L_OBF = 0x2200
L_L2 = 0x2C00
L_P = 0x3600
L_DUMMY = 0x3A00
L_FLAG = 0x2180
L_HM = 0x3C00
sDRY = 84
L_WO = 0x4000
L_F = 0xC000
LDS_BYTES = 0x14000
G_B = 0x300000

S_K, S_V, S_WQ, S_WS, S_X, S_A, S_B, S_DBG, S_OUT = 40, 44, 48, 52, 56, 60, 64, 68, 72
S_C = 48
sTEAM, sTIDX, sKAP = 89, 90, 97
sW, sH, sBb, sQT, sR, sKV, sROLE, sIDX, sMU, sXCD = 76, 77, 78, 79, 80, 81, 82, 83, 84, 85
sSELLO, sSELHI, sSPIN, sT2, sT3 = 86, 87, 88, 91, 92
sSCALE, sLOG2E, sBH, sWQO = 93, 94, 95, 96
sTS = 98

def srd(n): return 's[%d:%d]' % (n, n + 3)
def vr(a, n): return 'v[%d:%d]' % (a, a + n - 1)
DPP = ' row_mask:0xf bank_mask:0xf'
BFLY = ('quad_perm:[1,0,3,2]', 'quad_perm:[2,3,0,1]', 'row_half_mirror', 'row_mirror')

def stamp(idx, va=18, vd=22):
    if not TS: return
    E('s_memrealtime s[%d:%d]' % (sTS, sTS + 1))
    E('s_waitcnt lgkmcnt(0)')
    E('v_mov_b32 v%d, s%d' % (vd, sTS))
    E('s_lshl_b32 s%d, s2, 11' % sT3)
    E('s_lshl_b32 s%d, s%d, 7' % (sT2, sW))
    E('s_add_u32 s%d, s%d, s%d' % (sT3, sT3, sT2))
    E('s_add_u32 s%d, s%d, %d' % (sT3, sT3, TS_B + idx * 4))
    E('v_mov_b32 v%d, s%d' % (va, sT3))
    E('buffer_store_dword v%d, v%d, %s, 0 offen' % (vd, va, srd(S_WS)))

DBGT = int(OPT.get('dbgt', 0))
def dbgstamp(word, invert=False):
    if not DBGT: return
    E('s_memrealtime s[%d:%d]' % (sTS, sTS + 1))
    E('s_waitcnt lgkmcnt(0)')
    if invert: E('s_not_b32 s%d, s%d' % (sTS, sTS))
    E('v_mov_b32 v22, s%d' % sTS)
    E('s_mov_b64 s[100:101], exec')
    E('s_mov_b64 exec, 1')
    E('buffer_atomic_umax v22, off, %s, 0 offset:%d sc1' % (srd(S_DBG), 144 + word * 4))
    E('s_mov_b64 exec, s[100:101]')

def row_allreduce(v, op):
    for step in BFLY:
        E('s_nop 1')
        E('v_%s_f32_dpp v%d, v%d, v%d %s%s' % (op, v, v, v, step, DPP))

def rows_allreduce(v, tmp, op):
    ins = 'v_%s_f32' % op
    E('v_mov_b32 v%d, v%d' % (tmp, v))
    E('s_nop 1')
    E('v_permlane32_swap_b32 v%d, v%d' % (v, tmp))
    E('%s v%d, v%d, v%d' % (ins, v, v, tmp))
    E('v_mov_b32 v%d, v%d' % (tmp, v))
    E('s_nop 1')
    E('v_permlane16_swap_b32 v%d, v%d' % (v, tmp))
    E('%s v%d, v%d, v%d' % (ins, v, v, tmp))

def wave_allreduce(v, tmp, op):
    row_allreduce(v, op)
    rows_allreduce(v, tmp, op)

def rne_bf16(v):
    E('v_cvt_pk_bf16_f32 v%d, v%d, v%d' % (v, v, v))
    E('v_and_b32 v%d, 0xffff0000, v%d' % (v, v))

def unpack(lo, hi, src):
    E('v_lshlrev_b32 v%d, 16, v%d' % (lo, src))
    E('v_and_b32 v%d, 0xffff0000, v%d' % (hi, src))

def layernorm(X, F, T):
    for i in range(5): unpack(F + 2 * i, F + 2 * i + 1, X + i)
    E('v_add_f32 v%d, v%d, v%d' % (T, F, F + 1))
    E('v_add_f32 v%d, v%d, v%d' % (T + 1, F + 2, F + 3))
    for i in (4, 6, 8):
        E('v_add_f32 v%d, v%d, v%d' % (T, T, F + i))
        E('v_add_f32 v%d, v%d, v%d' % (T + 1, T + 1, F + i + 1))
    E('v_add_f32 v%d, v%d, v%d' % (T, T, T + 1))
    wave_allreduce(T, T + 1, 'add')
    E('v_mul_f32 v%d, 0x3acccccd, v%d' % (T, T))
    E('v_sub_f32 v%d, v%d, v%d' % (T + 2, F, T))
    E('v_mul_f32 v%d, v%d, v%d' % (T + 1, T + 2, T + 2))
    for i in range(1, 10):
        E('v_sub_f32 v%d, v%d, v%d' % (T + 2, F + i, T))
        E('v_fmac_f32 v%d, v%d, v%d' % (T + 1, T + 2, T + 2))
    wave_allreduce(T + 1, T + 2, 'add')
    E('v_mul_f32 v%d, 0x3acccccd, v%d' % (T + 1, T + 1))
    rne_bf16(T)
    rne_bf16(T + 1)
    E('v_add_f32 v%d, 0x3727c5ac, v%d' % (T + 1, T + 1))
    rne_bf16(T + 1)
    E('v_sqrt_f32 v%d, v%d' % (T + 1, T + 1))
    E('s_nop 0')
    rne_bf16(T + 1)
    E('v_rcp_f32 v%d, v%d' % (T + 2, T + 1))
    for i in range(5):
        a, b = F + 2 * i, F + 2 * i + 1
        E('v_sub_f32 v%d, v%d, v%d' % (a, a, T))
        E('v_sub_f32 v%d, v%d, v%d' % (b, b, T))
        E('v_cvt_pk_bf16_f32 v%d, v%d, v%d' % (X + i, a, b))
        unpack(a, b, X + i)
        for r in (a, b):
            E('v_mul_f32 v%d, v%d, v%d' % (T + 3, r, T + 2))
            E('v_fma_f32 v%d, -v%d, v%d, v%d' % (r, T + 3, T + 1, r))
            E('v_fma_f32 v%d, v%d, v%d, v%d' % (r, r, T + 2, T + 3))
        E('v_cvt_pk_bf16_f32 v%d, v%d, v%d' % (X + i, a, b))

def pair_gemv(Wa, Wb, Lp, ACC, T, first=False):
    for d in range(4):
        t0, t1 = T + (2 * d) % 4, T + (2 * d + 1) % 4
        E('v_perm_b32 v%d, v%d, v%d, s%d' % (t0, Wb + d, Wa + d, sSELLO))
        E('v_perm_b32 v%d, v%d, v%d, s%d' % (t1, Wb + d, Wa + d, sSELHI))
        if first:
            E('v_dot2_f32_bf16 v%d, v%d, v%d, 0' % (ACC + 2 * d, t0, Lp))
            E('v_dot2_f32_bf16 v%d, v%d, v%d, 0' % (ACC + 2 * d + 1, t1, Lp))
        else:
            E('v_dot2c_f32_bf16 v%d, v%d, v%d' % (ACC + 2 * d, t0, Lp))
            E('v_dot2c_f32_bf16 v%d, v%d, v%d' % (ACC + 2 * d + 1, t1, Lp))

def acc8_rows_reduce(A):
    E('s_nop 2')
    for i in range(4): E('v_permlane32_swap_b32 v%d, v%d' % (A + i, A + 4 + i))
    for i in range(4): E('v_add_f32 v%d, v%d, v%d' % (A + i, A + i, A + 4 + i))
    E('s_nop 0')
    E('v_permlane16_swap_b32 v%d, v%d' % (A, A + 2))
    E('v_permlane16_swap_b32 v%d, v%d' % (A + 1, A + 3))
    E('v_add_f32 v%d, v%d, v%d' % (A, A, A + 2))
    E('v_add_f32 v%d, v%d, v%d' % (A + 1, A + 1, A + 3))

def half_combine(R):
    E('s_nop 1')
    E('v_permlane32_swap_b32 v%d, v%d' % (R, R + 2))
    E('v_permlane32_swap_b32 v%d, v%d' % (R + 1, R + 3))
    E('v_add_f32 v%d, v%d, v%d' % (R, R, R + 2))
    E('v_add_f32 v%d, v%d, v%d' % (R + 1, R + 1, R + 3))

def spin_guard(label_bail):
    E('s_add_u32 s%d, s%d, 1' % (sSPIN, sSPIN))
    E('s_cmp_gt_u32 s%d, 0x40000' % sSPIN)
    E('s_cbranch_scc1 %s' % label_bail)

def build_srd(n, ptr, nbytes):
    E('s_mov_b32 s%d, s%d' % (n, ptr))
    E('s_mov_b32 s%d, s%d' % (n + 1, ptr + 1))
    E('s_mov_b32 s%d, 0x%x' % (n + 2, nbytes))
    E('s_mov_b32 s%d, 0x20000' % (n + 3))

NS = int(OPT.get('ns', 12))
POOL = 64 - 4 * NS
PREF = int(OPT.get('pref', 1))
NWK = int(OPT.get('nwk', 16 - NS))
NSTOP = int(OPT.get('nstop', NS))
QP_B = 0x200000
CNT_B = 0x280000
out.append('; @launch grid=(256,1,1) block=(1024,1,1) lds=%d' % LDS_BYTES)
out.append('.amdgcn_target "amdgcn-amd-amdhsa--gfx950"')
out.append('.text')
out.append('.globl %s' % NAME)
out.append('.p2align 8')
out.append('.type %s,@function' % NAME)
L(NAME)
E('s_cmp_ge_u32 s2, 256')
E('s_cbranch_scc1 L_end')
E('s_load_dwordx16 s[16:31], s[0:1], 0')
E('s_load_dwordx8 s[32:39], s[0:1], 64')
E('v_lshrrev_b32 v3, 6, v0')
E('v_and_b32 v0, 63, v0')
E('v_readfirstlane_b32 s%d, v3' % sW)
E('v_lshlrev_b32 v1, 4, v0')
E('s_lshr_b32 s%d, s2, 3' % sH)
E('s_add_u32 s%d, s2, s%d' % (sR, sH))
E('s_and_b32 s%d, s%d, 7' % (sR, sR))
E('s_lshr_b32 s%d, s%d, 2' % (sBb, sR))
E('s_and_b32 s%d, s%d, 3' % (sQT, sR))
E('s_lshl_b32 s%d, s%d, 5' % (sBH, sBb))
E('s_add_u32 s%d, s%d, s%d' % (sBH, sBH, sH))
E('s_mul_i32 s6, s%d, %d' % (sQT, NS))
E('s_add_u32 s6, s6, s%d' % sW)
E('s_sub_u32 s6, s6, 1')
E('s_lshl_b32 s6, s6, 14')
E('s_lshl_b32 s%d, s%d, 20' % (sKV, sBH))
E('s_add_u32 s%d, s%d, s6' % (sKV, sKV))
E('s_mov_b32 s%d, 0' % sTEAM)
E('s_mul_i32 s6, s2, 52429')
E('s_lshr_b32 s%d, s6, 18' % sTIDX)
E('s_mul_i32 s6, s%d, 5' % sTIDX)
E('s_sub_u32 s%d, s2, s6' % sKAP)
E('s_cmp_lt_u32 s2, 135')
E('s_cselect_b32 s%d, 1, 0' % sTEAM)
E('s_cbranch_scc1 L_role1')
E('s_sub_u32 s%d, s2, 135' % sTIDX)
E('s_cmp_lt_u32 s2, 243')
E('s_cselect_b32 s%d, 2, 0' % sTEAM)
L('L_role1')
E('s_mov_b32 s%d, 0' % sROLE)
E('s_sub_u32 s%d, s2, 136' % sIDX)
E('s_cmp_lt_u32 s2, 136')
E('s_cbranch_scc1 L_roledone')
E('s_cmp_lt_u32 s2, 216')
E('s_cselect_b32 s%d, 3, 0' % sROLE)
L('L_roledone')
E('s_mov_b32 s%d, 0x05040100' % sSELLO)
E('s_mov_b32 s%d, 0x07060302' % sSELHI)
E('s_mov_b32 s%d, 0x3db504f3' % sSCALE)
E('s_mov_b32 s%d, 0x3fb8aa3b' % sLOG2E)
E('s_mov_b32 s%d, 0' % sSPIN)
E('s_add_u32 s3, s%d, s%d' % (sH, sW))
E('s_lshl_b32 s3, s3, 10')
E('s_lshl_b32 s%d, s%d, 7' % (sWQO, sBH))
E('s_add_u32 s%d, s%d, %d' % (sWQO, sWQO, CNT_B))
E('v_and_b32 v19, 15, v0')
E('v_lshlrev_b32 v19, 5, v19')
E('v_lshrrev_b32 v20, 4, v0')
E('v_lshl_add_u32 v20, v20, 3, v19')
E('s_lshl_b32 s6, s%d, 9' % sW)
E('v_add_u32 v21, s6, v20')
E('s_waitcnt lgkmcnt(0)')
build_srd(S_X, 16, 2560)
build_srd(S_K, 18, 0x4000000)
build_srd(S_V, 20, 0x4000000)
build_srd(S_WQ, 22, 640 * 8192)
build_srd(S_WS, 38, WS_BYTES)
build_srd(S_DBG, 36, 256)
build_srd(S_OUT, 34, 2560)
stamp(0)

WQ0, K0 = 24, 64
q = []
def issue(name, text):
    q.append(name); E(text)
def wait_for(name):
    if name not in q: return
    i = q.index(name)
    E('s_waitcnt vmcnt(%d)' % (len(q) - 1 - i))
    del q[:i + 1]
def kv_load(which, t, reg):
    E('s_add_u32 s6, s3, %d' % (t * 1024))
    E('s_and_b32 s6, s6, 0x3fff')
    E('s_add_u32 s6, s6, s%d' % sKV)
    issue('%s%d' % (which, t), 'buffer_load_dwordx4 %s, v1, %s, s6 offen %s' % (vr(reg, 4), srd(S_K if which == 'K' else S_V), KVFLAG))
def Sreg(t): return K0 + 4 * t if t < 10 else K0 + 4 * (t - 10) + 1
def Vreg(t): return WQ0 + 4 * t if t < 10 else K0 + 4 * t

E('s_cmp_eq_u32 s%d, 0' % sW)
E('s_cbranch_scc0 L_normb')
C('service wave: nonce, resets, q partial over 80 wq rows (both b), q gather')
dbgstamp(4, True)
E('s_setprio 3')
E('v_mov_b32 v9, 0')
E('ds_write_b32 v9, v9 offset:%d' % L_FLAG)
E('s_memrealtime s[8:9]')
E('v_mul_u32_u24 v3, 20, v0')
E('buffer_load_dwordx4 v[4:7], v3, %s, 0 offen' % srd(S_X))
E('buffer_load_dword v8, v3, %s, 0 offen offset:16' % srd(S_X))
E('buffer_load_dwordx4 v[24:27], v3, %s, 0 offen offset:1280' % srd(S_X))
E('buffer_load_dword v28, v3, %s, 0 offen offset:1296' % srd(S_X))
E('v_lshrrev_b32 v9, 4, v0')
E('v_and_b32 v10, 15, v0')
E('s_mov_b32 s6, %d' % (20 * 8192))
E('v_mul_lo_u32 v2, v9, s6')
E('v_lshl_add_u32 v2, v10, 4, v2')
E('s_mul_i32 s7, s%d, %d' % (sR, 80 * 8192))
E('s_lshl_b32 s6, s%d, 8' % sH)
E('s_add_u32 s7, s7, s6')
for t in range(20):
    if t: E('s_add_u32 s7, s7, 8192')
    E('buffer_load_dwordx4 %s, v2, %s, s7 offen %s' % (vr(48 + 4 * t, 4), srd(S_WQ), WQFLAG))
E('s_waitcnt lgkmcnt(0)')
E('s_barrier')
E('s_lshl_b64 s[8:9], s[8:9], 16')
E('s_or_b32 s9, s9, 0x80000000')
E('v_mov_b32 v44, s8')
E('v_mov_b32 v45, s9')
E('v_mov_b32 v46, 0')
E('v_mov_b32 v47, 0')
for r in (12, 13, 14, 15): E('v_mov_b32 v%d, -1' % r)
E('s_lshl_b32 s12, s%d, 3' % sH)
E('s_mov_b64 exec, 1')
E('buffer_atomic_cmpswap_x2 v[44:47], off, %s, s12 sc0 sc1' % srd(S_DBG))
C('sentinel resets for every slot this WG will write (data v[12:15] = -1)')
E('s_lshl_b32 s6, s%d, 7' % sH)
E('s_lshl_b32 s7, s%d, 3' % sR)
E('s_add_u32 s6, s6, s7')
E('s_add_u32 s6, s6, %d' % ML_B)
E('buffer_store_dwordx2 v[12:13], v1, %s, s6 offen sc1' % srd(S_WS))
E('s_cmp_eq_u32 s%d, 0' % sQT)
E('s_cbranch_scc0 L_rs2')
E('v_mov_b32 v9, 0')
E('buffer_store_dword v9, off, %s, s%d sc1' % (srd(S_WS), sWQO))
L('L_rs2')
E('s_lshl_b32 s6, s%d, 12' % sH)
E('s_lshl_b32 s7, s%d, 9' % sR)
E('s_add_u32 s6, s6, s7')
E('s_add_u32 s6, s6, %d' % O_B)
E('s_mov_b32 exec_lo, -1')
E('buffer_store_dwordx4 v[12:15], v1, %s, s6 offen sc1' % srd(S_WS))
E('s_mov_b64 exec, -1')
E('s_cmp_lt_u32 s%d, 5' % sR)
E('s_cbranch_scc0 L_rs3')
E('v_lshrrev_b32 v9, 3, v0')
E('v_lshlrev_b32 v9, 12, v9')
E('v_and_b32 v10, 7, v0')
E('v_lshl_add_u32 v9, v10, 4, v9')
E('s_lshl_b32 s6, s%d, 15' % sR)
E('s_lshl_b32 s7, s%d, 7' % sH)
E('s_add_u32 s6, s6, s7')
E('s_add_u32 s6, s6, %d' % Y_B)
E('buffer_store_dwordx4 v[12:15], v9, %s, s6 offen sc1' % srd(S_WS))
L('L_rs3')
E('s_cmp_eq_u32 s%d, 1' % sTEAM)
E('s_cbranch_scc0 L_rs4')
E('v_lshrrev_b32 v9, 5, v0')
E('v_mul_u32_u24 v9, 2560, v9')
E('v_and_b32 v10, 31, v0')
E('v_lshl_add_u32 v9, v10, 4, v9')
E('s_mul_i32 s6, s%d, 10240' % sTIDX)
E('s_lshl_b32 s7, s%d, 9' % sKAP)
E('s_add_u32 s6, s6, s7')
E('s_add_u32 s6, s6, %d' % G_B)
E('s_add_u32 s7, s6, 5120')
E('buffer_store_dwordx4 v[12:15], v9, %s, s6 offen sc1' % srd(S_WS))
E('buffer_store_dwordx4 v[12:15], v9, %s, s7 offen sc1' % srd(S_WS))
L('L_rs4')
E('s_cmp_eq_u32 s%d, 2' % sTEAM)
E('s_cbranch_scc0 L_rsdone')
E('v_lshrrev_b32 v9, 2, v0')
E('v_mul_u32_u24 v9, %d, v9' % ZS)
E('v_and_b32 v10, 3, v0')
E('v_lshl_add_u32 v9, v10, 4, v9')
E('s_lshl_b32 s6, s%d, 6' % sTIDX)
E('s_add_u32 s6, s6, %d' % Z_B)
for i in range(5):
    if i: E('s_add_u32 s6, s6, %d' % (16 * ZS))
    E('buffer_store_dwordx4 v[12:15], v9, %s, s6 offen sc1' % srd(S_WS))
L('L_rsdone')
stamp(16)
E('s_waitcnt vmcnt(23)')
stamp(17)
layernorm(4, 9, 30)
layernorm(24, 9, 30)
E('v_lshrrev_b32 v9, 4, v0')
E('v_lshlrev_b32 v9, 3, v9')
E('s_lshl_b32 s6, s%d, 5' % sR)
E('v_add_u32 v9, s6, v9')
E('v_add_u32 v10, 4, v9')
LP = [list(range(30, 40)), [12, 13, 14, 15, 16, 17, 29, 19, 2, 3]]
for bb, X in ((0, 4), (1, 24)):
    for i in range(5):
        E('ds_bpermute_b32 v%d, v9, v%d' % (LP[bb][i], X + i))
        E('ds_bpermute_b32 v%d, v10, v%d' % (LP[bb][5 + i], X + i))
E('s_waitcnt lgkmcnt(0)')
stamp(18)
E('s_waitcnt vmcnt(3)')
ACC1 = [40, 41, 42, 43, 24, 25, 26, 27]
ACC0 = [4, 5, 6, 7, 8, 9, 10, 11]
TT = [18, 22, 23, 28]
for p in range(10):
    Wa, Wb = 48 + 8 * p, 52 + 8 * p
    for d in range(4):
        t0, t1 = TT[(2 * d) % 4], TT[(2 * d + 1) % 4]
        E('v_perm_b32 v%d, v%d, v%d, s%d' % (t0, Wb + d, Wa + d, sSELLO))
        E('v_perm_b32 v%d, v%d, v%d, s%d' % (t1, Wb + d, Wa + d, sSELHI))
        for bb, ACC in ((0, ACC0), (1, ACC1)):
            if p == 0:
                E('v_dot2_f32_bf16 v%d, v%d, v%d, 0' % (ACC[2 * d], t0, LP[bb][p]))
                E('v_dot2_f32_bf16 v%d, v%d, v%d, 0' % (ACC[2 * d + 1], t1, LP[bb][p]))
            else:
                E('v_dot2c_f32_bf16 v%d, v%d, v%d' % (ACC[2 * d], t0, LP[bb][p]))
                E('v_dot2c_f32_bf16 v%d, v%d, v%d' % (ACC[2 * d + 1], t1, LP[bb][p]))
E('s_nop 2')
for i in range(4): E('v_mov_b32 v%d, v%d' % (36 + i, 24 + i))
for i in range(4): E('v_mov_b32 v%d, v%d' % (32 + i, 40 + i))
acc8_rows_reduce(4)
acc8_rows_reduce(32)
E('s_waitcnt vmcnt(0)')
E('v_readfirstlane_b32 s10, v44')
E('v_readfirstlane_b32 s11, v45')
E('s_nop 3')
E('s_cmp_eq_u64 s[10:11], 0')
E('s_cselect_b32 s10, s8, s10')
E('s_cselect_b32 s11, s9, s11')
E('s_and_b32 s10, s10, 0xffff0000')
E('v_mov_b32 v6, s10')
E('v_mov_b32 v7, s11')
E('v_mov_b32 v34, s10')
E('v_mov_b32 v35, s11')
E('v_lshlrev_b32 v2, 1, v20')
E('s_lshl_b32 s9, s%d, 14' % sH)
E('s_lshl_b32 s8, s%d, 11' % sR)
E('s_add_u32 s8, s9, s8')
E('s_add_u32 s8, s8, %d' % QP_B)
E('buffer_store_dwordx4 v[4:7], v2, %s, s8 offen sc1' % srd(S_WS))
E('buffer_store_dwordx4 v[32:35], v2, %s, s8 offen offset:1024 sc1' % srd(S_WS))
E('v_mov_b32 v3, 1')
E('s_mov_b64 exec, 1')
E('buffer_atomic_add v3, off, %s, s12 sc1' % srd(S_DBG))
E('s_mov_b64 exec, -1')
stamp(19)
E('s_lshl_b32 s7, s%d, 10' % sBb)
E('s_add_u32 s9, s9, s7')
E('s_add_u32 s9, s9, %d' % QP_B)
L('L_qpoll')
E('s_mov_b32 s7, s9')
for i in range(8):
    E('buffer_load_dwordx4 %s, v1, %s, s7 offen offset:%d sc1' % (vr(24 + 4 * i, 4), srd(S_WS), (i & 1) * 2048))
    if i & 1: E('s_add_u32 s7, s7, 4096')
E('s_waitcnt vmcnt(0)')
E('v_xor_b32 v2, s10, v26')
E('v_xor_b32 v3, s11, v27')
for i in range(1, 8):
    E('v_xor_b32 v4, s10, v%d' % (26 + 4 * i))
    E('v_xor_b32 v5, s11, v%d' % (27 + 4 * i))
    E('v_or3_b32 v2, v2, v4, v5')
E('v_or_b32 v2, v2, v3')
E('v_cmp_ne_u32 vcc, 0, v2')
E('s_cbranch_vccz L_qgo')
spin_guard('L_qgo')
E('s_branch L_qpoll')
L('L_qgo')
stamp(20)
for i in (0, 2, 4, 6):
    for k in range(2): E('v_add_f32 v%d, v%d, v%d' % (24 + 4 * i + k, 24 + 4 * i + k, 28 + 4 * i + k))
for i in (0, 4):
    for k in range(2): E('v_add_f32 v%d, v%d, v%d' % (24 + 4 * i + k, 24 + 4 * i + k, 32 + 4 * i + k))
for k in range(2): E('v_add_f32 v%d, v%d, v%d' % (24 + k, 24 + k, 40 + k))
E('v_cvt_pk_bf16_f32 v24, v24, v25')
E('v_lshlrev_b32 v2, 2, v0')
E('ds_write_b32 v2, v24 offset:%d' % L_QBF)
E('v_mov_b32 v2, 0')
E('v_mov_b32 v3, 1')
E('s_waitcnt lgkmcnt(0)')
E('ds_write_b32 v2, v3 offset:%d' % L_FLAG)
E('s_branch L_norm0')
L('L_normb')
E('s_barrier')
L('L_norm0')
E('s_setprio 1')
C('tail weight DMA: 2 wo slots + 2 ffn slots per wave')
E('s_mov_b32 s%d, s24' % S_A)
E('s_mov_b32 s%d, s25' % (S_A + 1))
E('s_cmp_lt_u32 s%d, 5' % sR)
E('s_cselect_b32 s%d, %d, 0' % (S_A + 2, 4096 * 1280))
E('s_mov_b32 s%d, 0x20000' % (S_A + 3))
E('s_lshl_b32 s10, s%d, 7' % sH)
E('s_lshl_b32 s6, s%d, 2' % sW)
E('s_add_u32 s10, s10, s6')
E('s_mul_i32 s10, s10, 1280')
E('s_lshl_b32 s7, s%d, 8' % sR)
E('s_add_u32 s10, s10, s7')
E('s_add_u32 s11, s10, %d' % (64 * 1280))
E('v_lshrrev_b32 v14, 4, v0')
E('v_mul_u32_u24 v14, 1280, v14')
E('v_and_b32 v15, 15, v0')
E('v_lshl_add_u32 v14, v15, 4, v14')
E('s_lshl_b32 s8, s%d, 10' % sW)
E('s_add_u32 s9, s8, %d' % L_WO)
E('s_mov_b32 m0, s9')
E('s_add_u32 s9, s9, 16384')
E('buffer_load_dwordx4 v14, %s, s10 offen %s lds' % (srd(S_A), WFLAG))
E('s_mov_b32 m0, s9')
build_srd(S_B, 28, 0)
build_srd(S_C, 30, 0)
E('buffer_load_dwordx4 v14, %s, s11 offen %s lds' % (srd(S_A), WFLAG))
E('s_mov_b32 s10, 0')
E('s_mov_b32 s11, 0')
E('v_mov_b32 v16, v1')
E('s_cmp_eq_u32 s%d, 1' % sTEAM)
E('s_cbranch_scc0 L_dma2')
E('s_mov_b32 s%d, %d' % (S_B + 2, 640 * 3456))
E('s_mov_b32 s%d, %d' % (S_C + 2, 640 * 3456))
E('v_lshrrev_b32 v16, 3, v0')
E('v_mul_u32_u24 v16, 3456, v16')
E('v_and_b32 v17, 7, v0')
E('v_lshl_add_u32 v16, v17, 4, v16')
E('s_lshl_b32 s6, s%d, 7' % sKAP)
E('s_lshl_b32 s7, s%d, 3' % sW)
E('s_add_u32 s6, s6, s7')
E('s_mul_i32 s10, s6, 3456')
E('s_lshl_b32 s7, s%d, 7' % sTIDX)
E('s_add_u32 s10, s10, s7')
E('s_mov_b32 s11, s10')
E('s_branch L_dma3')
L('L_dma2')
E('s_cmp_eq_u32 s%d, 2' % sTEAM)
E('s_cbranch_scc0 L_dma3')
E('s_mov_b32 s%d, s32' % S_B)
E('s_mov_b32 s%d, s33' % (S_B + 1))
E('s_mov_b32 s%d, s32' % S_C)
E('s_mov_b32 s%d, s33' % (S_C + 1))
E('s_mul_i32 s10, s%d, 20480' % sTIDX)
E('s_add_u32 s%d, s10, 20480' % (S_B + 2))
E('s_add_u32 s%d, s10, 20480' % (S_C + 2))
E('s_add_u32 s10, s10, s8')
E('s_add_u32 s11, s10, 16384')
L('L_dma3')
E('s_add_u32 s9, s8, %d' % L_F)
E('s_mov_b32 m0, s9')
E('s_add_u32 s9, s9, 16384')
E('buffer_load_dwordx4 v16, %s, s10 offen %s lds' % (srd(S_B), WFLAG))
E('s_mov_b32 m0, s9')
E('s_nop 0')
E('buffer_load_dwordx4 v16, %s, s11 offen %s lds' % (srd(S_C), WFLAG))
for k in range(8): E('v_mov_b32 v%d, 0' % (10 + k))
E('v_mov_b32 v19, 0xff61b1e6')
E('v_mov_b32 v20, 0')
E('s_cmp_eq_u32 s%d, 0' % sW)
E('s_cbranch_scc1 L_claim0')
E('s_cmp_gt_u32 s%d, %d' % (sW, 16 - NWK))
E('s_cbranch_scc1 L_claim0')
E('s_cmp_gt_u32 s%d, %d' % (sW, NS))
E('s_cbranch_scc1 L_idle')

def qwait(tag):
    E('v_mov_b32 v6, 0')
    L('L_qwait%s' % tag)
    E('ds_read_b32 v2, v6 offset:%d' % L_FLAG)
    E('s_waitcnt lgkmcnt(0)')
    E('v_readfirstlane_b32 s6, v2')
    E('s_cmp_eq_u32 s6, 1')
    E('s_cbranch_scc1 L_qok%s' % tag)
    spin_guard('L_qok%s' % tag)
    E('s_sleep 2')
    E('s_branch L_qwait%s' % tag)
    L('L_qok%s' % tag)

def claim():
    E('s_setprio 0')
    E('v_mov_b32 v23, 1')
    E('s_mov_b64 exec, 1')
    issue('CLAIM', 'buffer_atomic_add v23, off, %s, s%d sc0 sc1' % (srd(S_WS), sWQO))
    E('s_mov_b64 exec, -1')

def k_batch(bt):
    ts = list(range(4 * bt, 4 * bt + 4))
    wait_for('K%d' % ts[-1])
    for t in ts: E('v_dot2_f32_bf16 v%d, v%d, v2, 0' % (Sreg(t), K0 + 4 * t))
    for d in range(1, 4):
        for t in ts: E('v_dot2c_f32_bf16 v%d, v%d, v%d' % (Sreg(t), K0 + 4 * t + d, 2 + d))
    for step in BFLY:
        for t in ts: E('v_add_f32_dpp v%d, v%d, v%d %s%s' % (Sreg(t), Sreg(t), Sreg(t), step, DPP))
    for t in (ts[0], ts[2]):
        a, b = Sreg(t), Sreg(t + 1)
        E('v_cvt_pk_bf16_f32 v6, v%d, v%d' % (a, b))
        unpack(a, b, 6)
        E('v_mul_f32 v%d, s%d, v%d' % (a, sSCALE, a))
        E('v_mul_f32 v%d, s%d, v%d' % (b, sSCALE, b))
        E('v_cvt_pk_bf16_f32 v6, v%d, v%d' % (a, b))
        unpack(a, b, 6)

def softmax_merge(n):
    C('softmax merge')
    E('v_max3_f32 v6, v%d, v%d, v%d' % (Sreg(0), Sreg(1), Sreg(2)))
    for t in range(3, n - 1, 2): E('v_max3_f32 v6, v6, v%d, v%d' % (Sreg(t), Sreg(t + 1)))
    E('v_max3_f32 v6, v6, v%d, v19' % Sreg(n - 1))
    rows_allreduce(6, 7, 'max')
    E('v_sub_f32 v8, v19, v6')
    E('v_mul_f32 v8, s%d, v8' % sLOG2E)
    E('v_exp_f32 v8, v8')
    E('v_mul_f32 v7, s%d, v6' % sLOG2E)
    E('v_mov_b32 v19, v6')
    for t in range(n): E('v_fma_f32 v%d, v%d, s%d, -v7' % (Sreg(t), Sreg(t), sLOG2E))
    for t in range(n): E('v_exp_f32 v%d, v%d' % (Sreg(t), Sreg(t)))
    for k in range(8): E('v_mul_f32 v%d, v%d, v8' % (10 + k, 10 + k))
    E('v_fma_f32 v20, v20, v8, v%d' % Sreg(0))
    E('v_add_f32 v9, v%d, v%d' % (Sreg(1), Sreg(2)))
    for t in range(3, n - 1, 2):
        E('v_add_f32 v20, v20, v%d' % Sreg(t))
        E('v_add_f32 v9, v9, v%d' % Sreg(t + 1))
    E('v_add_f32 v20, v20, v%d' % Sreg(n - 1))
    E('v_add_f32 v20, v20, v9')
    for i in range(n // 2): E('v_cvt_pk_bf16_f32 v%d, v%d, v%d' % (2 + i, Sreg(2 * i), Sreg(2 * i + 1)))
def load_q():
    E('v_and_b32 v6, 15, v0')
    E('v_lshlrev_b32 v6, 4, v6')
    E('ds_read_b128 v[2:5], v6 offset:%d' % L_QBF)
    E('s_waitcnt lgkmcnt(0)')

L('L_chunk')
for t in range(16): kv_load('K', t, K0 + 4 * t)
for t in range(10): kv_load('V', t, Vreg(t))
qwait('a')
load_q()
stamp(1)
k_batch(0); k_batch(1); k_batch(2)
kv_load('V', 10, Vreg(10)); kv_load('V', 11, Vreg(11))
k_batch(3)
for t in range(12, 16): kv_load('V', t, Vreg(t))
stamp(2)
softmax_merge(16)
stamp(3)
for p in range(8):
    wait_for('V%d' % (2 * p + 1))
    pair_gemv(Vreg(2 * p), Vreg(2 * p + 1), 2 + p, 10, 64)
E('s_branch L_done')
L('L_claim0')
qwait('b')
E('s_cmp_eq_u32 s%d, 0' % sW)
E('s_cbranch_scc0 L_ccd')
C('wave 15: all WGs have finished their resets?')
E('v_and_b32 v6, 31, v0')
E('v_lshlrev_b32 v6, 3, v6')
L('L_cc')
E('buffer_load_dword v23, v6, %s, 0 offen sc1' % srd(S_DBG))
E('s_waitcnt vmcnt(0)')
E('v_and_b32 v23, 0xffff, v23')
E('v_cmp_gt_u32 vcc, 8, v23')
E('s_cbranch_vccz L_ccd')
spin_guard('L_ccd')
E('s_sleep 16')
E('s_branch L_cc')
L('L_ccd')
q[:] = []
claim()
E('s_branch L_next')
L('L_small')
def kv_small(which, t, reg):
    E('s_add_u32 s6, s3, %d' % (t * 1024))
    E('s_and_b32 s6, s6, 0x1fff')
    E('s_add_u32 s6, s6, s%d' % sKV)
    issue('%s%d' % (which, t), 'buffer_load_dwordx4 %s, v1, %s, s6 offen %s' % (vr(reg, 4), srd(S_K if which == 'K' else S_V), KVFLAG))
q[:] = []
for t in range(8): kv_small('K', t, K0 + 4 * t)
for t in range(8): kv_small('V', t, Vreg(t))
if PREF: claim()
load_q()
k_batch(0); k_batch(1)
softmax_merge(8)
for p in range(4):
    wait_for('V%d' % (2 * p + 1))
    pair_gemv(Vreg(2 * p), Vreg(2 * p + 1), 2 + p, 10, 64)
if not PREF: claim()
L('L_next')
wait_for('CLAIM')
E('v_readfirstlane_b32 s6, v23')
E('s_nop 1')
E('s_cmp_lt_u32 s6, %d' % (2 * POOL))
E('s_cbranch_scc0 L_done')
E('s_add_u32 s6, s6, %d' % (8 * NS))
E('s_lshl_b32 s6, s6, 13')
E('s_lshl_b32 s%d, s%d, 20' % (sKV, sBH))
E('s_add_u32 s%d, s%d, s6' % (sKV, sKV))
E('s_branch L_small')
L('L_idle')
E('s_waitcnt vmcnt(0)')
L('L_done')
E('s_setprio 1')
rows_allreduce(20, 6, 'add')
E('s_lshl_b32 s6, s%d, 3' % sW)
E('v_mov_b32 v6, s6')
E('v_mov_b32 v8, v19')
E('v_mov_b32 v9, v20')
E('s_mov_b64 exec, 1')
E('ds_write_b64 v6, v[8:9] offset:%d' % L_ML)
E('s_mov_b64 exec, -1')
acc8_rows_reduce(10)
E('ds_write_b64 v21, v[10:11] offset:%d' % L_QP)
E('s_waitcnt lgkmcnt(0)')
E('s_barrier')
stamp(4)
E('s_cmp_eq_u32 s%d, 0' % sW)
E('s_cbranch_scc0 L_t1')
C('wave 0: publish O partial')
E('v_and_b32 v14, 15, v0')
E('v_lshlrev_b32 v14, 3, v14')
E('ds_read_b64 v[16:17], v14 offset:%d' % L_ML)
E('v_and_b32 v2, 31, v0')
E('v_lshlrev_b32 v2, 4, v2')
E('v_lshrrev_b32 v3, 5, v0')
E('v_lshl_add_u32 v4, v3, 12, v2')
for i in range(8): E('ds_read_b128 %s, v4 offset:%d' % (vr(24 + 4 * i, 4), L_QP + i * 512))
E('s_waitcnt lgkmcnt(8)')
E('v_mov_b32 v19, v16')
row_allreduce(19, 'max')
E('v_sub_f32 v16, v16, v19')
E('v_mul_f32 v16, s%d, v16' % sLOG2E)
E('v_exp_f32 v16, v16')
E('s_nop 0')
E('v_mul_f32 v20, v16, v17')
row_allreduce(20, 'add')
E('v_mov_b32 v17, v16')
E('s_nop 1')
E('v_mov_b32_dpp v17, v16 row_ror:8 row_mask:0xc bank_mask:0xf')
E('s_nop 1')
for i in range(8): E('v_mov_b32_dpp v%d, v17 row_newbcast:%d%s' % (56 + i, i, DPP))
E('s_waitcnt lgkmcnt(0)')
for k in range(4): E('v_mul_f32 v%d, v%d, v56' % (24 + k, 24 + k))
for i in range(1, 8):
    for k in range(4): E('v_fmac_f32 v%d, v%d, v%d' % (24 + k, 24 + 4 * i + k, 56 + i))
half_combine(24)
E('v_lshl_add_u32 v2, v3, 3, v2')
E('s_lshl_b32 s6, s%d, 12' % sH)
E('s_lshl_b32 s7, s%d, 9' % sR)
E('s_add_u32 s6, s6, s7')
E('s_add_u32 s6, s6, %d' % O_B)
E('buffer_store_dwordx2 v[24:25], v2, %s, s6 offen sc1' % srd(S_WS))
E('v_mov_b32 v16, v19')
E('v_mov_b32 v17, v20')
E('s_lshl_b32 s6, s%d, 7' % sH)
E('s_lshl_b32 s7, s%d, 3' % sR)
E('s_add_u32 s6, s6, s7')
E('s_add_u32 s6, s6, %d' % ML_B)
E('s_mov_b64 exec, 1')
E('buffer_store_dwordx2 v[16:17], v1, %s, s6 offen sc1' % srd(S_WS))
stamp(5)
dbgstamp(6)
E('s_endpgm')


SLP = int(OPT.get('slp', 0))
DRY = int(OPT.get('dry', 1))
def masked_poll(tag, loads, tmp, thr=None, slp=0):
    for i in range(len(loads)): E('s_mov_b64 s[%d:%d], -1' % (16 + 2 * i, 17 + 2 * i))
    L('L_%spoll' % tag)
    for i, (d, n, va, sr, so, im) in enumerate(loads):
        E('s_mov_b64 exec, s[%d:%d]' % (16 + 2 * i, 17 + 2 * i))
        E('s_cbranch_execz L_%ssk%d' % (tag, i))
        op = {1: 'dword', 2: 'dwordx2', 4: 'dwordx4'}[n]
        E('buffer_load_%s %s, v%d, %s, s%d offen offset:%d sc1' % (op, vr(d, n) if n > 1 else 'v%d' % d, va, srd(sr), so, im))
        L('L_%ssk%d' % (tag, i))
    E('s_mov_b64 exec, -1')
    E('s_waitcnt vmcnt(0)')
    for i, (d, n, va, sr, so, im) in enumerate(loads):
        if n == 4:
            E('v_max3_u32 v%d, v%d, v%d, v%d' % (tmp, d, d + 1, d + 2))
            E('v_max_u32 v%d, v%d, v%d' % (tmp, tmp, d + 3))
            E('v_cmp_eq_u32 s[%d:%d], -1, v%d' % (16 + 2 * i, 17 + 2 * i, tmp))
        else:
            E('v_cmp_eq_u32 s[%d:%d], -1, v%d' % (16 + 2 * i, 17 + 2 * i, d))
    E('s_mov_b64 s[4:5], s[16:17]')
    for i in range(1, len(loads)): E('s_or_b64 s[4:5], s[4:5], s[%d:%d]' % (16 + 2 * i, 17 + 2 * i))
    E('s_cmp_eq_u64 s[4:5], 0')
    E('s_cbranch_scc1 L_%sgo' % tag)
    spin_guard('L_%sgo' % tag)
    if thr is not None:
        E('s_bcnt1_i32_b64 s4, s[16:17]')
        for i in range(1, len(loads)):
            E('s_bcnt1_i32_b64 s5, s[%d:%d]' % (16 + 2 * i, 17 + 2 * i))
            E('s_add_u32 s4, s4, s5')
        E('s_cmp_le_u32 s4, %d' % thr)
        E('s_cbranch_scc1 L_%spoll' % tag)
        E('s_sleep %d' % slp)
    E('s_branch L_%spoll' % tag)
    L('L_%sgo' % tag)

L('L_t1')
E('s_cmp_eq_u32 s%d, 7' % sW)
E('s_cbranch_scc0 L_t1b')
C('wave 7: gather O partials of this head, combine, bf16 -> LDS')
E('v_lshrrev_b32 v4, 5, v0')
E('v_and_b32 v5, 31, v0')
E('v_lshlrev_b32 v6, 11, v4')
E('v_lshl_add_u32 v6, v5, 4, v6')
E('v_lshlrev_b32 v7, 5, v4')
E('s_lshl_b32 s8, s%d, 12' % sH)
E('s_add_u32 s8, s8, %d' % O_B)
E('s_lshl_b32 s9, s%d, 7' % sH)
E('s_add_u32 s9, s9, %d' % ML_B)
E('v_lshlrev_b32 v12, 8, v4')
E('v_lshl_add_u32 v12, v5, 3, v12')
masked_poll('y', [(48 + 4 * i, 4, 6, S_WS, 8, i * 512) for i in range(4)] + [(64, 4, 7, S_WS, 9, 0), (68, 4, 7, S_WS, 9, 16)], 8)
stamp(6)
E('v_max3_f32 v8, v64, v66, v68')
E('v_max_f32 v8, v8, v70')
for i in range(4):
    E('v_sub_f32 v%d, v%d, v8' % (64 + 2 * i, 64 + 2 * i))
    E('v_mul_f32 v%d, s%d, v%d' % (64 + 2 * i, sLOG2E, 64 + 2 * i))
    E('v_exp_f32 v%d, v%d' % (64 + 2 * i, 64 + 2 * i))
E('s_nop 0')
E('v_mul_f32 v9, v64, v65')
for i in range(1, 4): E('v_fmac_f32 v9, v%d, v%d' % (64 + 2 * i, 65 + 2 * i))
E('v_rcp_f32 v9, v9')
for k in range(4): E('v_mul_f32 v%d, v64, v%d' % (48 + k, 48 + k))
for i in range(1, 4):
    for k in range(4): E('v_fmac_f32 v%d, v%d, v%d' % (48 + k, 64 + 2 * i, 48 + 4 * i + k))
for k in range(4): E('v_mul_f32 v%d, v9, v%d' % (48 + k, 48 + k))
E('v_cvt_pk_bf16_f32 v10, v48, v49')
E('v_cvt_pk_bf16_f32 v11, v50, v51')
E('ds_write_b64 v12, v[10:11] offset:%d' % L_OBF)
E('s_waitcnt lgkmcnt(0)')
E('s_barrier')
E('s_endpgm')

L('L_t1b')
E('s_cmp_lt_u32 s%d, 5' % sW)
E('s_cbranch_scc0 L_t2')
E('s_cmp_lt_u32 s%d, 5' % sR)
E('s_cbranch_scc0 L_end')
C('waves 1..4: two y tiles each')
E('s_sub_u32 s15, s%d, 1' % sW)
E('v_lshrrev_b32 v2, 4, v0')
E('v_bfe_u32 v3, v0, 2, 2')
E('v_lshl_add_u32 v3, v2, 3, v3')
E('v_lshlrev_b32 v3, 8, v3')
E('v_and_b32 v4, 3, v0')
E('v_lshl_add_u32 v3, v4, 3, v3')
E('s_lshl_b32 s6, s15, 6')
E('v_add_u32 v3, s6, v3')
for tl in range(2):
    for s in range(4):
        for hf in range(2):
            E('ds_read_b64_tr_b16 %s, v3 offset:%d' % (vr(32 + 16 * tl + 4 * s + 2 * hf, 2), L_WO + s * 8192 + hf * 1024 + tl * 32))
E('v_and_b32 v13, 1, v0')
E('v_lshlrev_b32 v13, 8, v13')
E('v_lshl_add_u32 v13, v2, 4, v13')
E('s_lshl_b32 s6, s%d, 15' % sR)
E('s_lshl_b32 s7, s15, 13')
E('s_add_u32 s6, s6, s7')
E('s_lshl_b32 s7, s%d, 7' % sH)
E('s_add_u32 s6, s6, s7')
E('s_add_u32 s6, s6, %d' % Y_B)
E('s_add_u32 s7, s6, 4096')
E('v_and_b32 v14, 15, v0')
E('v_lshlrev_b32 v14, 6, v14')
E('v_lshl_add_u32 v14, v2, 4, v14')
E('s_waitcnt lgkmcnt(0)')
E('s_barrier')
for s in range(4): E('ds_read_b128 %s, v13 offset:%d' % (vr(72 + 4 * s, 4), L_OBF + 64 * s))
for s in range(4):
    E('s_waitcnt lgkmcnt(%d)' % (3 - s))
    E('v_mfma_f32_16x16x32_bf16 v[88:91], %s, %s, %s' % (vr(32 + 4 * s, 4), vr(72 + 4 * s, 4), '0' if s == 0 else 'v[88:91]'))
    E('v_mfma_f32_16x16x32_bf16 v[92:95], %s, %s, %s' % (vr(48 + 4 * s, 4), vr(72 + 4 * s, 4), '0' if s == 0 else 'v[92:95]'))
E('s_nop 4')
E('s_mov_b32 exec_lo, 0x30003')
E('s_mov_b32 exec_hi, 0x30003')
E('buffer_store_dwordx4 v[88:91], v14, %s, s6 offen sc1' % srd(S_WS))
E('buffer_store_dwordx4 v[92:95], v14, %s, s7 offen sc1' % srd(S_WS))
stamp(7)
E('s_endpgm')

def two_val_xor16(a, b, t0, t1):
    E('v_mov_b32 v%d, v%d' % (t0, a))
    E('v_mov_b32 v%d, v%d' % (t1, b))
    E('s_nop 1')
    E('v_permlane16_swap_b32 v%d, v%d' % (a, t0))
    E('v_permlane16_swap_b32 v%d, v%d' % (b, t1))
    E('v_add_f32 v%d, v%d, v%d' % (a, a, t0))
    E('v_add_f32 v%d, v%d, v%d' % (b, b, t1))

def res_add_pack(R, X):
    E('v_cvt_pk_bf16_f32 v%d, v%d, v%d' % (R + 2, R, R + 1))
    unpack(R, R + 1, R + 2)
    unpack(5, 6, X)
    E('v_add_f32 v%d, v%d, v5' % (R, R))
    E('v_add_f32 v%d, v%d, v6' % (R + 1, R + 1))
    E('v_cvt_pk_bf16_f32 v%d, v%d, v%d' % (R + 2, R, R + 1))

def h_slice_setup(sSIG):
    E('v_bfe_u32 v10, v0, 2, 1')
    E('v_mul_u32_u24 v10, 1280, v10')
    E('v_and_b32 v11, 3, v0')
    E('v_lshl_add_u32 v10, v11, 3, v10')
    E('v_lshrrev_b32 v11, 5, v0')
    E('v_lshl_add_u32 v10, v11, 2, v10')
    E('s_lshl_b32 s8, s%d, 5' % sSIG)
    E('buffer_load_dword v4, v10, %s, s8 offen' % srd(S_X))
    E('s_lshl_b32 s9, s%d, 12' % sSIG)
    E('s_add_u32 s9, s9, %d' % Y_B)

def h_slice(tag, R):
    masked_poll(tag, [(R + 4 * i, 4, 1, S_WS, 9, i * 1024) for i in range(4)], 8, int(OPT.get('ythr', 96)), int(OPT.get('yslp', 16)))
    stamp(8)
    for k in range(4):
        E('v_add_f32 v%d, v%d, v%d' % (R + k, R + k, R + 4 + k))
        E('v_add_f32 v%d, v%d, v%d' % (R + 8 + k, R + 8 + k, R + 12 + k))
    for k in range(4): E('v_add_f32 v%d, v%d, v%d' % (R + k, R + k, R + 8 + k))
    E('s_nop 0')
    for k in range(4): E('v_add_f32_dpp v%d, v%d, v%d row_ror:8%s' % (R + k, R + k, R + k, DPP))
    half_combine(R)
    two_val_xor16(R, R + 1, R + 2, R + 3)
    res_add_pack(R, 4)

L('L_t2')
E('s_cmp_eq_u32 s%d, 6' % sW)
E('s_cbranch_scc0 L_t3')
E('s_cmp_eq_u32 s%d, 1' % sTEAM)
E('s_cbranch_scc1 L_stats')
E('s_cmp_eq_u32 s%d, 3' % sROLE)
E('s_cbranch_scc0 L_end')
C('wave 6: final reducer')
E('s_cmp_ge_u32 s%d, 40' % sIDX)
E('s_cselect_b32 s12, 1, 0')
E('s_mul_i32 s7, s12, 40')
E('s_sub_u32 s13, s%d, s7' % sIDX)
h_slice_setup(13)
E('s_barrier')
h_slice('e', 64)
E('v_and_b32 v3, 35, v0')
E('s_lshl_b32 s6, s12, 2')
E('v_add_u32 v3, s6, v3')
E('v_lshlrev_b32 v3, 2, v3')
E('ds_bpermute_b32 v4, v3, v66')
E('s_mul_i32 s8, s12, 1280')
E('s_lshl_b32 s7, s13, 5')
E('s_add_u32 s8, s8, s7')
E('v_and_b32 v3, 3, v0')
E('v_lshlrev_b32 v2, 3, v3')
E('v_lshrrev_b32 v3, 5, v0')
E('v_lshl_add_u32 v2, v3, 2, v2')
E('s_mul_i32 s9, s%d, %d' % (sIDX, ZS))
E('s_add_u32 s9, s9, %d' % Z_B)
E('s_add_u32 s10, s9, 4096')
E('s_mov_b32 s%d, s38' % S_A)
E('s_mov_b32 s%d, s39' % (S_A + 1))
E('s_add_u32 s%d, s9, %d' % (S_A + 2, ZS))
E('s_mov_b32 s%d, 0x20000' % (S_A + 3))
E('s_waitcnt lgkmcnt(0)')
E('s_barrier')
masked_poll('f', [(32 + 4 * i, 4, 1, S_A, 9 if i < 4 else 10, (i & 3) * 1024) for i in range(7)], 8)
stamp(14)
for k in range(4):
    E('v_add_f32 v%d, v%d, v%d' % (32 + k, 32 + k, 36 + k))
    E('v_add_f32 v%d, v%d, v%d' % (40 + k, 40 + k, 44 + k))
    E('v_add_f32 v%d, v%d, v%d' % (48 + k, 48 + k, 52 + k))
for k in range(4):
    E('v_add_f32 v%d, v%d, v%d' % (32 + k, 32 + k, 40 + k))
    E('v_add_f32 v%d, v%d, v%d' % (48 + k, 48 + k, 56 + k))
for k in range(4): E('v_add_f32 v%d, v%d, v%d' % (32 + k, 32 + k, 48 + k))
E('s_nop 0')
for k in range(4): E('v_add_f32_dpp v%d, v%d, v%d row_ror:4%s' % (32 + k, 32 + k, 32 + k, DPP))
for k in range(4): E('v_add_f32_dpp v%d, v%d, v%d row_ror:8%s' % (32 + k, 32 + k, 32 + k, DPP))
half_combine(32)
two_val_xor16(32, 33, 34, 35)
res_add_pack(32, 4)
E('s_mov_b32 exec_lo, 0xf')
E('s_mov_b32 exec_hi, 0xf')
E('buffer_store_dword v34, v2, %s, s8 offen' % srd(S_OUT))
stamp(15)
E('s_endpgm')

L('L_t3')
E('s_cmp_lt_u32 s%d, 8' % sW)
E('s_cbranch_scc1 L_end')
E('s_sub_u32 s15, s%d, 8' % sW)
E('v_lshrrev_b32 v2, 4, v0')
E('v_bfe_u32 v3, v0, 2, 2')
E('v_and_b32 v7, 3, v0')
E('s_cmp_eq_u32 s%d, 1' % sTEAM)
E('s_cbranch_scc0 L_t4')
C('F1 team: h slice -> raw partial gate/up products, column sums, stats')
E('s_and_b32 s13, s15, 1')
E('s_lshr_b32 s14, s15, 1')
E('v_lshl_add_u32 v5, v2, 3, v3')
E('v_lshlrev_b32 v5, 7, v5')
E('v_lshl_add_u32 v5, v7, 3, v5')
E('s_lshl_b32 s6, s13, 14')
E('s_lshl_b32 s7, s14, 5')
E('s_add_u32 s6, s6, s7')
E('v_add_u32 v5, s6, v5')
for s in range(4):
    for hf in range(2):
        E('ds_read_b64_tr_b16 %s, v5 offset:%d' % (vr(32 + 4 * s + 2 * hf, 2), L_F + s * 4096 + hf * 512))
E('v_mov_b32 v12, 0x3f803f80')
E('v_lshlrev_b32 v13, 2, v0')
E('ds_write_b32 v13, v12 offset:%d' % (L_L2 + 512))
E('v_and_b32 v12, 15, v0')
E('v_min_u32 v12, 2, v12')
E('v_lshlrev_b32 v12, 8, v12')
E('v_lshl_add_u32 v15, v2, 4, v12')
E('s_lshl_b32 s8, s%d, 2' % sTIDX)
E('s_add_u32 s12, s14, s8')
E('s_mul_i32 s12, s12, 2560')
E('s_lshl_b32 s7, s%d, 9' % sKAP)
E('s_add_u32 s12, s12, s7')
E('s_mul_i32 s8, s13, 192')
E('s_add_u32 s12, s12, s8')
E('s_add_u32 s12, s12, %d' % G_B)
E('v_and_b32 v14, 15, v0')
E('v_lshlrev_b32 v14, 6, v14')
E('v_lshl_add_u32 v14, v2, 4, v14')
E('s_lshl_b32 s10, s%d, 3' % sKAP)
E('s_add_u32 s10, s10, s15')
h_slice_setup(10)
E('v_bfe_u32 v16, v0, 2, 1')
E('v_lshlrev_b32 v16, 8, v16')
E('v_lshl_add_u32 v16, v7, 3, v16')
E('v_lshl_add_u32 v16, v11, 2, v16')
E('s_lshl_b32 s6, s15, 5')
E('v_add_u32 v16, s6, v16')
E('s_barrier')
h_slice('n', 64)
E('ds_write_b32 v16, v66 offset:%d' % L_L2)
E('s_waitcnt lgkmcnt(0)')
E('s_barrier')
stamp(11)
for s in range(4): E('ds_read_b128 %s, v15 offset:%d' % (vr(64 + 4 * s, 4), L_L2 + 64 * s))
for s in range(4):
    E('s_waitcnt lgkmcnt(%d)' % (3 - s))
    E('v_mfma_f32_16x16x32_bf16 v[88:91], %s, %s, %s' % (vr(32 + 4 * s, 4), vr(64 + 4 * s, 4), '0' if s == 0 else 'v[88:91]'))
E('s_nop 5')
E('s_mov_b32 exec_lo, 0x70007')
E('s_mov_b32 exec_hi, 0x70007')
E('buffer_store_dwordx4 v[88:91], v14, %s, s12 offen sc1' % srd(S_WS))
stamp(23)
E('s_endpgm')
L('L_stats')
C('wave 6 of F1 WGs: stats of the 128-slice')
E('s_mul_i32 s11, s%d, 10240' % sTIDX)
E('s_lshl_b32 s7, s%d, 9' % sKAP)
E('s_add_u32 s11, s11, s7')
E('s_add_u32 s11, s11, %d' % (G_B + 384))
E('v_and_b32 v7, 3, v0')
E('v_lshrrev_b32 v11, 5, v0')
E('v_mul_u32_u24 v16, 2560, v7')
E('v_lshl_add_u32 v16, v11, 4, v16')
E('v_lshlrev_b32 v17, 3, v0')
E('v_mov_b32 v106, 0')
E('v_mov_b32 v107, 0')
E('s_barrier')
E('s_barrier')
E('ds_read_b64 v[96:97], v17 offset:%d' % L_L2)
E('s_waitcnt lgkmcnt(0)')
unpack(100, 101, 96)
unpack(102, 103, 97)
E('v_add_f32 v104, v100, v101')
E('v_add_f32 v105, v102, v103')
E('v_add_f32 v104, v104, v105')
def half_allreduce(v, t):
    row_allreduce(v, 'add')
    E('v_mov_b32 v%d, v%d' % (t, v))
    E('s_nop 1')
    E('v_permlane16_swap_b32 v%d, v%d' % (v, t))
    E('v_add_f32 v%d, v%d, v%d' % (v, v, t))
half_allreduce(104, 105)
E('v_mul_f32 v104, 0x3c000000, v104')
for k in range(4): E('v_sub_f32 v%d, v%d, v104' % (100 + k, 100 + k))
E('v_mul_f32 v105, v100, v100')
E('v_mul_f32 v98, v102, v102')
E('v_fmac_f32 v105, v101, v101')
E('v_fmac_f32 v98, v103, v103')
E('v_add_f32 v105, v105, v98')
half_allreduce(105, 98)
E('s_mov_b32 exec_lo, 0xf')
E('s_mov_b32 exec_hi, 0xf')
E('buffer_store_dwordx4 v[104:107], v16, %s, s11 offen sc1' % srd(S_WS))
stamp(25)
E('s_endpgm')

L('L_t4')
E('s_cmp_eq_u32 s%d, 2' % sTEAM)
E('s_cbranch_scc0 L_end')
C('F2 team: LN fixup, hm, down partial')
E('v_lshl_add_u32 v6, v2, 2, v3')
E('v_mul_u32_u24 v6, 1280, v6')
E('v_lshl_add_u32 v6, v7, 3, v6')
E('s_mul_i32 s6, s15, 160')
E('v_add_u32 v6, s6, v6')
for t in range(5): E('ds_read_b64_tr_b16 %s, v6 offset:%d' % (vr(52 + 2 * t, 2), L_F + t * 32))
E('s_mul_i32 s9, s%d, 2560' % sTIDX)
E('s_add_u32 s9, s9, %d' % G_B)
E('s_mul_i32 s6, s15, %d' % (5 * ZS))
E('s_lshl_b32 s7, s%d, 6' % sTIDX)
E('s_add_u32 s12, s6, s7')
E('s_add_u32 s12, s12, %d' % Z_B)
E('v_and_b32 v14, 1, v0')
E('v_mul_u32_u24 v14, %d, v14' % (40 * ZS))
E('v_lshl_add_u32 v14, v2, 4, v14')
E('v_min_u32 v9, 25, v0')
E('v_lshlrev_b32 v9, 4, v9')
E('v_and_b32 v16, 1, v0')
E('v_lshlrev_b32 v17, 6, v16')
E('v_lshl_add_u32 v17, v2, 4, v17')
E('v_lshlrev_b32 v19, 4, v2')
E('v_lshlrev_b32 v20, 4, v16')
E('v_mov_b32 v90, 0x43000000')
E('s_barrier')
E('s_cmp_eq_u32 s15, 0')
E('s_cbranch_scc0 L_gb')
masked_poll('g', [(64 + 4 * i, 4, 9, S_WS, 9, i * 512) for i in range(5)], 8)
stamp(24)
for k in range(4):
    E('v_add_f32 v%d, v%d, v%d' % (84 + k, 64 + k, 68 + k))
    E('v_add_f32 v%d, v%d, v%d' % (96 + k, 72 + k, 76 + k))
for k in range(4): E('v_add_f32 v%d, v%d, v%d' % (84 + k, 84 + k, 80 + k))
for k in range(4): E('v_add_f32 v%d, v%d, v%d' % (84 + k, 84 + k, 96 + k))
E('ds_write_b128 v9, v[84:87] offset:%d' % L_P)
E('v_mul_f32 v92, 0x3e4ccccd, v84')
for i in range(5): E('v_sub_f32 v%d, v%d, v92' % (96 + i, 64 + 4 * i))
E('v_mul_f32 v88, v96, v96')
E('v_mul_f32 v89, v97, v97')
E('v_fmac_f32 v88, v98, v98')
E('v_fmac_f32 v89, v99, v99')
E('v_fmac_f32 v88, v100, v100')
E('v_add_f32 v88, v88, v89')
E('v_fma_f32 v93, v88, v90, v85')
E('v_mul_f32 v93, 0x3acccccd, v93')
E('v_cvt_pk_bf16_f32 v94, v92, v93')
unpack(92, 93, 94)
E('v_add_f32 v93, 0x3727c5ac, v93')
rne_bf16(93)
E('v_sqrt_f32 v93, v93')
E('s_nop 0')
rne_bf16(93)
E('v_rcp_f32 v93, v93')
E('s_mov_b32 exec_lo, 0x3000000')
E('s_mov_b32 exec_hi, 0')
E('ds_write_b64 v9, v[92:93] offset:%d' % (L_P + 128))
E('s_mov_b64 exec, -1')
L('L_gb')
E('s_waitcnt lgkmcnt(0)')
E('s_barrier')
E('ds_read_b128 v[64:67], v17 offset:%d' % L_P)
E('ds_read_b128 v[68:71], v19 offset:%d' % (L_P + 128))
E('ds_read_b128 v[72:75], v17 offset:%d' % (L_P + 192))
E('ds_read_b128 v[76:79], v19 offset:%d' % (L_P + 320))
E('ds_read_b64 v[80:81], v20 offset:%d' % (L_P + 512))
E('s_waitcnt lgkmcnt(0)')
for k in range(4):
    E('v_fma_f32 v%d, -v80, v%d, v%d' % (64 + k, 68 + k, 64 + k))
    E('v_fma_f32 v%d, -v80, v%d, v%d' % (72 + k, 76 + k, 72 + k))
for k in range(4):
    E('v_mul_f32 v%d, v%d, v81' % (64 + k, 64 + k))
    E('v_mul_f32 v%d, v%d, v81' % (72 + k, 72 + k))
for j, base in enumerate((64, 66, 72, 74)): E('v_cvt_pk_bf16_f32 v%d, v%d, v%d' % (84 + j, base, base + 1))
for j, base in enumerate((64, 66, 72, 74)): unpack(base, base + 1, 84 + j)
for k in range(4): E('v_mul_f32 v%d, v%d, v%d' % (64 + k, 64 + k, 72 + k))
E('v_cvt_pk_bf16_f32 v10, v64, v65')
E('v_cvt_pk_bf16_f32 v11, v66, v67')
E('s_nop 1')
for t in range(5): E('v_mfma_f32_16x16x16_bf16 %s, %s, v[10:11], 0' % (vr(104 + 4 * t, 4), vr(52 + 2 * t, 2)))
E('s_nop 1')
E('s_mov_b32 exec_lo, 0x30003')
E('s_mov_b32 exec_hi, 0x30003')
for t in range(5):
    E('buffer_store_dwordx4 %s, v14, %s, s12 offen sc1' % (vr(104 + 4 * t, 4), srd(S_WS)))
    if t < 4: E('s_add_u32 s12, s12, %d' % ZS)
stamp(12)
L('L_end')
E('s_endpgm')
out.append('.section .rodata,"a"')
out.append('.p2align 6')
out.append('.amdhsa_kernel %s' % NAME)
out.append('  .amdhsa_next_free_vgpr 128')
out.append('  .amdhsa_next_free_sgpr 102')
out.append('  .amdhsa_accum_offset 128')
out.append('  .amdhsa_group_segment_fixed_size 0')
out.append('  .amdhsa_kernarg_size 96')
out.append('  .amdhsa_user_sgpr_count 2')
out.append('  .amdhsa_user_sgpr_kernarg_segment_ptr 1')
out.append('  .amdhsa_system_sgpr_workgroup_id_x 1')
out.append('  .amdhsa_float_denorm_mode_32 3')
out.append('.end_amdhsa_kernel')
print('\n'.join(out))
```

```python
import sys

NAME = 'sequential_preLN__mha_block_cached__glu_gated_bilinear__decode_kernel'
OPT = dict(a.split('=') for a in sys.argv[1:] if '=' in a)
TS = int(OPT.get('ts', 0))
def flag(k, d):
    v = OPT.get(k, d)
    return '' if v == '-' else v.replace('+', ' ')
KVFLAG = flag('kv', 'nt')
WFLAG = flag('w', 'nt')
WQFLAG = flag('wq', '-')
D = int(OPT.get('d', 6))
D1 = int(OPT.get('d1', 8))
DMAPOS = OPT.get('dma', 'end')

out = []
def E(s): out.append('  ' + s)
def L(s): out.append(s + ':')
def C(s): out.append('  ; ' + s)

ML_B = 0x0
O_B = 0x10000
Y_B = 0x40000
H_B = 0x80000
Z_B = 0x100000
ZS = 108 * 64
TS_B = 0x800000
WS_BYTES = 0x10000000
L_QP = 0x0
L_QBF = 0x2000
L_ML = 0x2100
L_OBF = 0x2200
L_L2 = 0x2C00
L_P = 0x3600
L_DUMMY = 0x3A00
L_FLAG = 0x2180
L_HM = 0x3C00
sDRY = 84
L_WO = 0x4000
L_F = 0xC000
LDS_BYTES = 0x14000
G_B = 0x300000

S_K, S_V, S_WQ, S_WS, S_X, S_A, S_B, S_DBG, S_OUT = 40, 44, 48, 52, 56, 60, 64, 68, 72
S_C = 48
sTEAM, sTIDX, sKAP = 89, 90, 97
sW, sH, sBb, sQT, sR, sKV, sROLE, sIDX, sMU, sXCD = 76, 77, 78, 79, 80, 81, 82, 83, 84, 85
sSELLO, sSELHI, sSPIN, sT2, sT3 = 86, 87, 88, 91, 92
sSCALE, sLOG2E, sBH, sWQO = 93, 94, 95, 96
sTS = 98

def srd(n): return 's[%d:%d]' % (n, n + 3)
def vr(a, n): return 'v[%d:%d]' % (a, a + n - 1)
DPP = ' row_mask:0xf bank_mask:0xf'
BFLY = ('quad_perm:[1,0,3,2]', 'quad_perm:[2,3,0,1]', 'row_half_mirror', 'row_mirror')

def stamp(idx, va=18, vd=22):
    if not TS: return
    if TS == 2 and idx not in (0, 26, 15): return
    E('s_memrealtime s[%d:%d]' % (sTS, sTS + 1))
    E('s_waitcnt lgkmcnt(0)')
    E('v_mov_b32 v%d, s%d' % (vd, sTS))
    E('s_lshl_b32 s%d, s2, 11' % sT3)
    E('s_lshl_b32 s%d, s%d, 7' % (sT2, sW))
    E('s_add_u32 s%d, s%d, s%d' % (sT3, sT3, sT2))
    E('s_add_u32 s%d, s%d, %d' % (sT3, sT3, TS_B + idx * 4))
    E('v_mov_b32 v%d, s%d' % (va, sT3))
    E('buffer_store_dword v%d, v%d, %s, 0 offen' % (vd, va, srd(S_WS)))

DBGT = int(OPT.get('dbgt', 0))
def dbgstamp(word, invert=False):
    if not DBGT: return
    E('s_memrealtime s[%d:%d]' % (sTS, sTS + 1))
    E('s_waitcnt lgkmcnt(0)')
    if invert: E('s_not_b32 s%d, s%d' % (sTS, sTS))
    E('v_mov_b32 v22, s%d' % sTS)
    E('s_mov_b64 s[100:101], exec')
    E('s_mov_b64 exec, 1')
    E('buffer_atomic_umax v22, off, %s, 0 offset:%d sc1' % (srd(S_DBG), 144 + word * 4))
    E('s_mov_b64 exec, s[100:101]')

def row_allreduce(v, op):
    for step in BFLY:
        E('s_nop 1')
        E('v_%s_f32_dpp v%d, v%d, v%d %s%s' % (op, v, v, v, step, DPP))

def rows_allreduce(v, tmp, op):
    ins = 'v_%s_f32' % op
    E('v_mov_b32 v%d, v%d' % (tmp, v))
    E('s_nop 1')
    E('v_permlane32_swap_b32 v%d, v%d' % (v, tmp))
    E('%s v%d, v%d, v%d' % (ins, v, v, tmp))
    E('v_mov_b32 v%d, v%d' % (tmp, v))
    E('s_nop 1')
    E('v_permlane16_swap_b32 v%d, v%d' % (v, tmp))
    E('%s v%d, v%d, v%d' % (ins, v, v, tmp))

def wave_allreduce(v, tmp, op):
    row_allreduce(v, op)
    rows_allreduce(v, tmp, op)

def rne_bf16(v):
    E('v_cvt_pk_bf16_f32 v%d, v%d, v%d' % (v, v, v))
    E('v_and_b32 v%d, 0xffff0000, v%d' % (v, v))

def unpack(lo, hi, src):
    E('v_lshlrev_b32 v%d, 16, v%d' % (lo, src))
    E('v_and_b32 v%d, 0xffff0000, v%d' % (hi, src))

def layernorm(X, F, T):
    for i in range(5): unpack(F + 2 * i, F + 2 * i + 1, X + i)
    E('v_add_f32 v%d, v%d, v%d' % (T, F, F + 1))
    E('v_add_f32 v%d, v%d, v%d' % (T + 1, F + 2, F + 3))
    for i in (4, 6, 8):
        E('v_add_f32 v%d, v%d, v%d' % (T, T, F + i))
        E('v_add_f32 v%d, v%d, v%d' % (T + 1, T + 1, F + i + 1))
    E('v_add_f32 v%d, v%d, v%d' % (T, T, T + 1))
    wave_allreduce(T, T + 1, 'add')
    E('v_mul_f32 v%d, 0x3acccccd, v%d' % (T, T))
    E('v_sub_f32 v%d, v%d, v%d' % (T + 2, F, T))
    E('v_mul_f32 v%d, v%d, v%d' % (T + 1, T + 2, T + 2))
    for i in range(1, 10):
        E('v_sub_f32 v%d, v%d, v%d' % (T + 2, F + i, T))
        E('v_fmac_f32 v%d, v%d, v%d' % (T + 1, T + 2, T + 2))
    wave_allreduce(T + 1, T + 2, 'add')
    E('v_mul_f32 v%d, 0x3acccccd, v%d' % (T + 1, T + 1))
    rne_bf16(T)
    rne_bf16(T + 1)
    E('v_add_f32 v%d, 0x3727c5ac, v%d' % (T + 1, T + 1))
    rne_bf16(T + 1)
    E('v_sqrt_f32 v%d, v%d' % (T + 1, T + 1))
    E('s_nop 0')
    rne_bf16(T + 1)
    E('v_rcp_f32 v%d, v%d' % (T + 2, T + 1))
    for i in range(5):
        a, b = F + 2 * i, F + 2 * i + 1
        E('v_sub_f32 v%d, v%d, v%d' % (a, a, T))
        E('v_sub_f32 v%d, v%d, v%d' % (b, b, T))
        E('v_cvt_pk_bf16_f32 v%d, v%d, v%d' % (X + i, a, b))
        unpack(a, b, X + i)
        for r in (a, b):
            E('v_mul_f32 v%d, v%d, v%d' % (T + 3, r, T + 2))
            E('v_fma_f32 v%d, -v%d, v%d, v%d' % (r, T + 3, T + 1, r))
            E('v_fma_f32 v%d, v%d, v%d, v%d' % (r, r, T + 2, T + 3))
        E('v_cvt_pk_bf16_f32 v%d, v%d, v%d' % (X + i, a, b))

def pair_gemv(Wa, Wb, Lp, ACC, T, first=False):
    for d in range(4):
        t0, t1 = T + (2 * d) % 4, T + (2 * d + 1) % 4
        E('v_perm_b32 v%d, v%d, v%d, s%d' % (t0, Wb + d, Wa + d, sSELLO))
        E('v_perm_b32 v%d, v%d, v%d, s%d' % (t1, Wb + d, Wa + d, sSELHI))
        if first:
            E('v_dot2_f32_bf16 v%d, v%d, v%d, 0' % (ACC + 2 * d, t0, Lp))
            E('v_dot2_f32_bf16 v%d, v%d, v%d, 0' % (ACC + 2 * d + 1, t1, Lp))
        else:
            E('v_dot2c_f32_bf16 v%d, v%d, v%d' % (ACC + 2 * d, t0, Lp))
            E('v_dot2c_f32_bf16 v%d, v%d, v%d' % (ACC + 2 * d + 1, t1, Lp))

def acc8_rows_reduce(A):
    E('s_nop 2')
    for i in range(4): E('v_permlane32_swap_b32 v%d, v%d' % (A + i, A + 4 + i))
    for i in range(4): E('v_add_f32 v%d, v%d, v%d' % (A + i, A + i, A + 4 + i))
    E('s_nop 0')
    E('v_permlane16_swap_b32 v%d, v%d' % (A, A + 2))
    E('v_permlane16_swap_b32 v%d, v%d' % (A + 1, A + 3))
    E('v_add_f32 v%d, v%d, v%d' % (A, A, A + 2))
    E('v_add_f32 v%d, v%d, v%d' % (A + 1, A + 1, A + 3))

def half_combine(R):
    E('s_nop 1')
    E('v_permlane32_swap_b32 v%d, v%d' % (R, R + 2))
    E('v_permlane32_swap_b32 v%d, v%d' % (R + 1, R + 3))
    E('v_add_f32 v%d, v%d, v%d' % (R, R, R + 2))
    E('v_add_f32 v%d, v%d, v%d' % (R + 1, R + 1, R + 3))

def spin_guard(label_bail):
    E('s_add_u32 s%d, s%d, 1' % (sSPIN, sSPIN))
    E('s_cmp_gt_u32 s%d, 0x40000' % sSPIN)
    E('s_cbranch_scc1 %s' % label_bail)

def build_srd(n, ptr, nbytes):
    E('s_mov_b32 s%d, s%d' % (n, ptr))
    E('s_mov_b32 s%d, s%d' % (n + 1, ptr + 1))
    E('s_mov_b32 s%d, 0x%x' % (n + 2, nbytes))
    E('s_mov_b32 s%d, 0x20000' % (n + 3))

NS = int(OPT.get('ns', 12))
POOL = 64 - 4 * NS
PREF = int(OPT.get('pref', 1))
NWK = int(OPT.get('nwk', 16 - NS))
NSTOP = int(OPT.get('nstop', NS))
QP_B = 0x200000
CNT_B = 0x280000
out.append('; @launch grid=(256,1,1) block=(1024,1,1) lds=%d' % LDS_BYTES)
out.append('.amdgcn_target "amdgcn-amd-amdhsa--gfx950"')
out.append('.text')
out.append('.globl %s' % NAME)
out.append('.p2align 8')
out.append('.type %s,@function' % NAME)
L(NAME)
E('s_cmp_ge_u32 s2, 256')
E('s_cbranch_scc1 L_end')
E('s_load_dwordx16 s[16:31], s[0:1], 0')
E('s_load_dwordx8 s[32:39], s[0:1], 64')
E('v_lshrrev_b32 v3, 6, v0')
E('v_and_b32 v0, 63, v0')
E('v_readfirstlane_b32 s%d, v3' % sW)
E('v_lshlrev_b32 v1, 4, v0')
E('s_lshr_b32 s%d, s2, 3' % sH)
E('s_add_u32 s%d, s2, s%d' % (sR, sH))
E('s_and_b32 s%d, s%d, 7' % (sR, sR))
E('s_lshr_b32 s%d, s%d, 2' % (sBb, sR))
E('s_and_b32 s%d, s%d, 3' % (sQT, sR))
E('s_lshl_b32 s%d, s%d, 5' % (sBH, sBb))
E('s_add_u32 s%d, s%d, s%d' % (sBH, sBH, sH))
E('s_mul_i32 s6, s%d, %d' % (sQT, NS))
E('s_add_u32 s6, s6, s%d' % sW)
E('s_sub_u32 s6, s6, 1')
E('s_lshl_b32 s6, s6, 14')
E('s_lshl_b32 s%d, s%d, 20' % (sKV, sBH))
E('s_add_u32 s%d, s%d, s6' % (sKV, sKV))
E('s_mov_b32 s%d, 0' % sTEAM)
E('s_mul_i32 s6, s2, 52429')
E('s_lshr_b32 s%d, s6, 18' % sTIDX)
E('s_mul_i32 s6, s%d, 5' % sTIDX)
E('s_sub_u32 s%d, s2, s6' % sKAP)
E('s_cmp_lt_u32 s2, 135')
E('s_cselect_b32 s%d, 1, 0' % sTEAM)
E('s_cbranch_scc1 L_role1')
E('s_sub_u32 s%d, s2, 135' % sTIDX)
E('s_cmp_lt_u32 s2, 243')
E('s_cselect_b32 s%d, 2, 0' % sTEAM)
L('L_role1')
E('s_mov_b32 s%d, 0' % sROLE)
E('s_sub_u32 s%d, s2, 136' % sIDX)
E('s_cmp_lt_u32 s2, 136')
E('s_cbranch_scc1 L_roledone')
E('s_cmp_lt_u32 s2, 216')
E('s_cselect_b32 s%d, 3, 0' % sROLE)
L('L_roledone')
E('s_mov_b32 s%d, 0x05040100' % sSELLO)
E('s_mov_b32 s%d, 0x07060302' % sSELHI)
E('s_mov_b32 s%d, 0x3db504f3' % sSCALE)
E('s_mov_b32 s%d, 0x3fb8aa3b' % sLOG2E)
E('s_mov_b32 s%d, 0' % sSPIN)
E('s_add_u32 s3, s%d, s%d' % (sH, sW))
E('s_lshl_b32 s3, s3, 10')
E('s_lshl_b32 s%d, s%d, 7' % (sWQO, sBH))
E('s_add_u32 s%d, s%d, %d' % (sWQO, sWQO, CNT_B))
E('v_and_b32 v19, 15, v0')
E('v_lshlrev_b32 v19, 5, v19')
E('v_lshrrev_b32 v20, 4, v0')
E('v_lshl_add_u32 v20, v20, 3, v19')
E('s_lshl_b32 s6, s%d, 9' % sW)
E('v_add_u32 v21, s6, v20')
E('s_waitcnt lgkmcnt(0)')
build_srd(S_X, 16, 2560)
build_srd(S_K, 18, 0x4000000)
build_srd(S_V, 20, 0x4000000)
build_srd(S_WQ, 22, 640 * 8192)
build_srd(S_WS, 38, WS_BYTES)
build_srd(S_DBG, 36, 256)
build_srd(S_OUT, 34, 2560)
stamp(0)

WQ0, K0 = 24, 64
q = []
def issue(name, text):
    q.append(name); E(text)
def wait_for(name):
    if name not in q: return
    i = q.index(name)
    E('s_waitcnt vmcnt(%d)' % (len(q) - 1 - i))
    del q[:i + 1]
def kv_load(which, t, reg):
    E('s_add_u32 s6, s3, %d' % (t * 1024))
    E('s_and_b32 s6, s6, 0x3fff')
    E('s_add_u32 s6, s6, s%d' % sKV)
    issue('%s%d' % (which, t), 'buffer_load_dwordx4 %s, v1, %s, s6 offen %s' % (vr(reg, 4), srd(S_K if which == 'K' else S_V), KVFLAG))
def Sreg(t): return K0 + 4 * t if t < 10 else K0 + 4 * (t - 10) + 1
def Vreg(t): return WQ0 + 4 * t if t < 10 else K0 + 4 * t

E('s_cmp_eq_u32 s%d, 0' % sW)
E('s_cbranch_scc0 L_normb')
C('service wave: nonce, resets, q partial over 80 wq rows (both b), q gather')
dbgstamp(4, True)
E('s_setprio 3')
E('v_mov_b32 v9, 0')
E('ds_write_b32 v9, v9 offset:%d' % L_FLAG)
E('s_memrealtime s[8:9]')
E('v_mul_u32_u24 v3, 20, v0')
E('buffer_load_dwordx4 v[4:7], v3, %s, 0 offen' % srd(S_X))
E('buffer_load_dword v8, v3, %s, 0 offen offset:16' % srd(S_X))
E('buffer_load_dwordx4 v[24:27], v3, %s, 0 offen offset:1280' % srd(S_X))
E('buffer_load_dword v28, v3, %s, 0 offen offset:1296' % srd(S_X))
E('v_lshrrev_b32 v9, 4, v0')
E('v_and_b32 v10, 15, v0')
E('s_mov_b32 s6, %d' % (20 * 8192))
E('v_mul_lo_u32 v2, v9, s6')
E('v_lshl_add_u32 v2, v10, 4, v2')
E('s_mul_i32 s7, s%d, %d' % (sR, 80 * 8192))
E('s_lshl_b32 s6, s%d, 8' % sH)
E('s_add_u32 s7, s7, s6')
for t in range(20):
    if t: E('s_add_u32 s7, s7, 8192')
    E('buffer_load_dwordx4 %s, v2, %s, s7 offen %s' % (vr(48 + 4 * t, 4), srd(S_WQ), WQFLAG))
E('s_waitcnt lgkmcnt(0)')
E('s_barrier')
E('s_lshl_b64 s[8:9], s[8:9], 16')
E('s_or_b32 s9, s9, 0x80000000')
E('v_mov_b32 v44, s8')
E('v_mov_b32 v45, s9')
E('v_mov_b32 v46, 0')
E('v_mov_b32 v47, 0')
for r in (12, 13, 14, 15): E('v_mov_b32 v%d, -1' % r)
E('s_lshl_b32 s12, s%d, 3' % sH)
E('s_mov_b64 exec, 1')
E('buffer_atomic_cmpswap_x2 v[44:47], off, %s, s12 sc0 sc1' % srd(S_DBG))
C('sentinel resets for every slot this WG will write (data v[12:15] = -1)')
E('s_lshl_b32 s6, s%d, 7' % sH)
E('s_lshl_b32 s7, s%d, 3' % sR)
E('s_add_u32 s6, s6, s7')
E('s_add_u32 s6, s6, %d' % ML_B)
E('buffer_store_dwordx2 v[12:13], v1, %s, s6 offen sc1' % srd(S_WS))
E('s_cmp_eq_u32 s%d, 0' % sQT)
E('s_cbranch_scc0 L_rs2')
E('v_mov_b32 v9, 0')
E('buffer_store_dword v9, off, %s, s%d sc1' % (srd(S_WS), sWQO))
L('L_rs2')
E('s_lshl_b32 s6, s%d, 12' % sH)
E('s_lshl_b32 s7, s%d, 9' % sR)
E('s_add_u32 s6, s6, s7')
E('s_add_u32 s6, s6, %d' % O_B)
E('s_mov_b32 exec_lo, -1')
E('buffer_store_dwordx4 v[12:15], v1, %s, s6 offen sc1' % srd(S_WS))
E('s_mov_b64 exec, -1')
E('s_cmp_lt_u32 s%d, 5' % sR)
E('s_cbranch_scc0 L_rs3')
E('v_lshrrev_b32 v9, 3, v0')
E('v_lshlrev_b32 v9, 12, v9')
E('v_and_b32 v10, 7, v0')
E('v_lshl_add_u32 v9, v10, 4, v9')
E('s_lshl_b32 s6, s%d, 15' % sR)
E('s_lshl_b32 s7, s%d, 7' % sH)
E('s_add_u32 s6, s6, s7')
E('s_add_u32 s6, s6, %d' % Y_B)
E('buffer_store_dwordx4 v[12:15], v9, %s, s6 offen sc1' % srd(S_WS))
L('L_rs3')
E('s_cmp_eq_u32 s%d, 1' % sTEAM)
E('s_cbranch_scc0 L_rs4')
E('v_lshrrev_b32 v9, 5, v0')
E('v_mul_u32_u24 v9, 2560, v9')
E('v_and_b32 v10, 31, v0')
E('v_lshl_add_u32 v9, v10, 4, v9')
E('s_mul_i32 s6, s%d, 10240' % sTIDX)
E('s_lshl_b32 s7, s%d, 9' % sKAP)
E('s_add_u32 s6, s6, s7')
E('s_add_u32 s6, s6, %d' % G_B)
E('s_add_u32 s7, s6, 5120')
E('buffer_store_dwordx4 v[12:15], v9, %s, s6 offen sc1' % srd(S_WS))
E('buffer_store_dwordx4 v[12:15], v9, %s, s7 offen sc1' % srd(S_WS))
L('L_rs4')
E('s_cmp_eq_u32 s%d, 2' % sTEAM)
E('s_cbranch_scc0 L_rsdone')
E('v_lshrrev_b32 v9, 2, v0')
E('v_mul_u32_u24 v9, %d, v9' % ZS)
E('v_and_b32 v10, 3, v0')
E('v_lshl_add_u32 v9, v10, 4, v9')
E('s_lshl_b32 s6, s%d, 6' % sTIDX)
E('s_add_u32 s6, s6, %d' % Z_B)
for i in range(5):
    if i: E('s_add_u32 s6, s6, %d' % (16 * ZS))
    E('buffer_store_dwordx4 v[12:15], v9, %s, s6 offen sc1' % srd(S_WS))
L('L_rsdone')
stamp(16)
E('s_waitcnt vmcnt(23)')
stamp(17)
layernorm(4, 9, 30)
layernorm(24, 9, 30)
E('v_lshrrev_b32 v9, 4, v0')
E('v_lshlrev_b32 v9, 3, v9')
E('s_lshl_b32 s6, s%d, 5' % sR)
E('v_add_u32 v9, s6, v9')
E('v_add_u32 v10, 4, v9')
LP = [list(range(30, 40)), [12, 13, 14, 15, 16, 17, 29, 19, 2, 3]]
for bb, X in ((0, 4), (1, 24)):
    for i in range(5):
        E('ds_bpermute_b32 v%d, v9, v%d' % (LP[bb][i], X + i))
        E('ds_bpermute_b32 v%d, v10, v%d' % (LP[bb][5 + i], X + i))
E('s_waitcnt lgkmcnt(0)')
stamp(18)
E('s_waitcnt vmcnt(3)')
ACC1 = [40, 41, 42, 43, 24, 25, 26, 27]
ACC0 = [4, 5, 6, 7, 8, 9, 10, 11]
TT = [18, 22, 23, 28]
for p in range(10):
    Wa, Wb = 48 + 8 * p, 52 + 8 * p
    for d in range(4):
        t0, t1 = TT[(2 * d) % 4], TT[(2 * d + 1) % 4]
        E('v_perm_b32 v%d, v%d, v%d, s%d' % (t0, Wb + d, Wa + d, sSELLO))
        E('v_perm_b32 v%d, v%d, v%d, s%d' % (t1, Wb + d, Wa + d, sSELHI))
        for bb, ACC in ((0, ACC0), (1, ACC1)):
            if p == 0:
                E('v_dot2_f32_bf16 v%d, v%d, v%d, 0' % (ACC[2 * d], t0, LP[bb][p]))
                E('v_dot2_f32_bf16 v%d, v%d, v%d, 0' % (ACC[2 * d + 1], t1, LP[bb][p]))
            else:
                E('v_dot2c_f32_bf16 v%d, v%d, v%d' % (ACC[2 * d], t0, LP[bb][p]))
                E('v_dot2c_f32_bf16 v%d, v%d, v%d' % (ACC[2 * d + 1], t1, LP[bb][p]))
E('s_nop 2')
for i in range(4): E('v_mov_b32 v%d, v%d' % (36 + i, 24 + i))
for i in range(4): E('v_mov_b32 v%d, v%d' % (32 + i, 40 + i))
acc8_rows_reduce(4)
acc8_rows_reduce(32)
E('s_waitcnt vmcnt(0)')
E('v_readfirstlane_b32 s10, v44')
E('v_readfirstlane_b32 s11, v45')
E('s_nop 3')
E('s_cmp_eq_u64 s[10:11], 0')
E('s_cselect_b32 s10, s8, s10')
E('s_cselect_b32 s11, s9, s11')
E('s_and_b32 s10, s10, 0xffff0000')
E('v_mov_b32 v6, s10')
E('v_mov_b32 v7, s11')
E('v_mov_b32 v34, s10')
E('v_mov_b32 v35, s11')
E('v_lshlrev_b32 v2, 1, v20')
E('s_lshl_b32 s9, s%d, 14' % sH)
E('s_lshl_b32 s8, s%d, 11' % sR)
E('s_add_u32 s8, s9, s8')
E('s_add_u32 s8, s8, %d' % QP_B)
E('buffer_store_dwordx4 v[4:7], v2, %s, s8 offen sc1' % srd(S_WS))
E('buffer_store_dwordx4 v[32:35], v2, %s, s8 offen offset:1024 sc1' % srd(S_WS))
E('v_mov_b32 v3, 1')
E('s_mov_b64 exec, 1')
E('buffer_atomic_add v3, off, %s, s12 sc1' % srd(S_DBG))
E('s_mov_b64 exec, -1')
stamp(19)
E('s_lshl_b32 s7, s%d, 10' % sBb)
E('s_add_u32 s9, s9, s7')
E('s_add_u32 s9, s9, %d' % QP_B)
L('L_qpoll')
E('s_mov_b32 s7, s9')
for i in range(8):
    E('buffer_load_dwordx4 %s, v1, %s, s7 offen offset:%d sc1' % (vr(24 + 4 * i, 4), srd(S_WS), (i & 1) * 2048))
    if i & 1: E('s_add_u32 s7, s7, 4096')
E('s_waitcnt vmcnt(0)')
E('v_xor_b32 v2, s10, v26')
E('v_xor_b32 v3, s11, v27')
for i in range(1, 8):
    E('v_xor_b32 v4, s10, v%d' % (26 + 4 * i))
    E('v_xor_b32 v5, s11, v%d' % (27 + 4 * i))
    E('v_or3_b32 v2, v2, v4, v5')
E('v_or_b32 v2, v2, v3')
E('v_cmp_ne_u32 vcc, 0, v2')
E('s_cbranch_vccz L_qgo')
spin_guard('L_qgo')
E('s_branch L_qpoll')
L('L_qgo')
stamp(20)
for i in (0, 2, 4, 6):
    for k in range(2): E('v_add_f32 v%d, v%d, v%d' % (24 + 4 * i + k, 24 + 4 * i + k, 28 + 4 * i + k))
for i in (0, 4):
    for k in range(2): E('v_add_f32 v%d, v%d, v%d' % (24 + 4 * i + k, 24 + 4 * i + k, 32 + 4 * i + k))
for k in range(2): E('v_add_f32 v%d, v%d, v%d' % (24 + k, 24 + k, 40 + k))
E('v_cvt_pk_bf16_f32 v24, v24, v25')
E('v_lshlrev_b32 v2, 2, v0')
E('ds_write_b32 v2, v24 offset:%d' % L_QBF)
E('v_mov_b32 v2, 0')
E('v_mov_b32 v3, 1')
E('s_waitcnt lgkmcnt(0)')
E('ds_write_b32 v2, v3 offset:%d' % L_FLAG)
E('s_setprio 1')
E('s_branch L_norm0')
L('L_normb')
E('s_setprio 1')
E('s_mov_b32 s15, s%d' % sW)
L('L_dma0')
C('tail weight DMA: 2 wo slots + 2 ffn slots per wave')
E('s_mov_b32 s%d, s24' % S_A)
E('s_mov_b32 s%d, s25' % (S_A + 1))
E('s_cmp_lt_u32 s%d, 5' % sR)
E('s_cselect_b32 s%d, %d, 0' % (S_A + 2, 4096 * 1280))
E('s_mov_b32 s%d, 0x20000' % (S_A + 3))
E('s_lshl_b32 s12, s%d, 7' % sH)
E('s_lshl_b32 s6, s15, 2')
E('s_add_u32 s12, s12, s6')
E('s_mul_i32 s12, s12, 1280')
E('s_lshl_b32 s7, s%d, 8' % sR)
E('s_add_u32 s12, s12, s7')
E('s_add_u32 s13, s12, %d' % (64 * 1280))
E('v_lshrrev_b32 v14, 4, v0')
E('v_mul_u32_u24 v14, 1280, v14')
E('v_and_b32 v15, 15, v0')
E('v_lshl_add_u32 v14, v15, 4, v14')
E('s_lshl_b32 s8, s15, 10')
build_srd(S_B, 28, 0)
build_srd(S_C, 30, 0)
E('s_mov_b32 s10, 0')
E('s_mov_b32 s11, 0')
E('v_mov_b32 v16, v1')
E('s_cmp_eq_u32 s%d, 1' % sTEAM)
E('s_cbranch_scc0 L_dma2')
E('s_mov_b32 s%d, %d' % (S_B + 2, 640 * 3456))
E('s_mov_b32 s%d, %d' % (S_C + 2, 640 * 3456))
E('v_lshrrev_b32 v16, 3, v0')
E('v_mul_u32_u24 v16, 3456, v16')
E('v_and_b32 v17, 7, v0')
E('v_lshl_add_u32 v16, v17, 4, v16')
E('s_lshl_b32 s6, s%d, 7' % sKAP)
E('s_lshl_b32 s7, s15, 3')
E('s_add_u32 s6, s6, s7')
E('s_mul_i32 s10, s6, 3456')
E('s_lshl_b32 s7, s%d, 7' % sTIDX)
E('s_add_u32 s10, s10, s7')
E('s_mov_b32 s11, s10')
E('s_branch L_dma3')
L('L_dma2')
E('s_cmp_eq_u32 s%d, 2' % sTEAM)
E('s_cbranch_scc0 L_dma3')
E('s_mov_b32 s%d, s32' % S_B)
E('s_mov_b32 s%d, s33' % (S_B + 1))
E('s_mov_b32 s%d, s32' % S_C)
E('s_mov_b32 s%d, s33' % (S_C + 1))
E('s_mul_i32 s10, s%d, 20480' % sTIDX)
E('s_add_u32 s%d, s10, 20480' % (S_B + 2))
E('s_add_u32 s%d, s10, 20480' % (S_C + 2))
E('s_add_u32 s10, s10, s8')
E('s_add_u32 s11, s10, 16384')
L('L_dma3')
E('s_add_u32 s9, s8, %d' % L_WO)
E('s_mov_b32 m0, s9')
E('s_cmp_eq_u32 s15, 0')
E('s_cbranch_scc1 L_dma4')
E('s_barrier')
L('L_dma4')
E('s_add_u32 s9, s9, 16384')
E('buffer_load_dwordx4 v14, %s, s12 offen %s lds' % (srd(S_A), WFLAG))
E('s_mov_b32 m0, s9')
E('s_add_u32 s9, s8, %d' % L_F)
E('buffer_load_dwordx4 v14, %s, s13 offen %s lds' % (srd(S_A), WFLAG))
E('s_mov_b32 m0, s9')
E('s_add_u32 s9, s9, 16384')
E('buffer_load_dwordx4 v16, %s, s10 offen %s lds' % (srd(S_B), WFLAG))
E('s_mov_b32 m0, s9')
E('s_cmp_eq_u32 s15, 15')
E('buffer_load_dwordx4 v16, %s, s11 offen %s lds' % (srd(S_C), WFLAG))
E('s_mov_b32 s15, 0')
E('s_cbranch_scc1 L_dma0')
L('L_norm0')
for k in range(8): E('v_mov_b32 v%d, 0' % (10 + k))
E('v_mov_b32 v19, 0xff61b1e6')
E('v_mov_b32 v20, 0')
E('s_cmp_eq_u32 s%d, 0' % sW)
E('s_cbranch_scc1 L_claim0')
E('s_cmp_gt_u32 s%d, %d' % (sW, 16 - NWK))
E('s_cbranch_scc1 L_claim0')
E('s_cmp_gt_u32 s%d, %d' % (sW, NS))
E('s_cbranch_scc1 L_idle')

def qwait(tag):
    E('v_mov_b32 v6, 0')
    L('L_qwait%s' % tag)
    E('ds_read_b32 v2, v6 offset:%d' % L_FLAG)
    E('s_waitcnt lgkmcnt(0)')
    E('v_readfirstlane_b32 s6, v2')
    E('s_cmp_eq_u32 s6, 1')
    E('s_cbranch_scc1 L_qok%s' % tag)
    spin_guard('L_qok%s' % tag)
    E('s_sleep 2')
    E('s_branch L_qwait%s' % tag)
    L('L_qok%s' % tag)

def claim():
    E('s_setprio 0')
    E('v_mov_b32 v23, 1')
    E('s_mov_b64 exec, 1')
    issue('CLAIM', 'buffer_atomic_add v23, off, %s, s%d sc0 sc1' % (srd(S_WS), sWQO))
    E('s_mov_b64 exec, -1')

def k_batch(bt):
    ts = list(range(4 * bt, 4 * bt + 4))
    wait_for('K%d' % ts[-1])
    for t in ts: E('v_dot2_f32_bf16 v%d, v%d, v2, 0' % (Sreg(t), K0 + 4 * t))
    for d in range(1, 4):
        for t in ts: E('v_dot2c_f32_bf16 v%d, v%d, v%d' % (Sreg(t), K0 + 4 * t + d, 2 + d))
    for step in BFLY:
        for t in ts: E('v_add_f32_dpp v%d, v%d, v%d %s%s' % (Sreg(t), Sreg(t), Sreg(t), step, DPP))
    for t in (ts[0], ts[2]):
        a, b = Sreg(t), Sreg(t + 1)
        E('v_cvt_pk_bf16_f32 v6, v%d, v%d' % (a, b))
        unpack(a, b, 6)
        E('v_mul_f32 v%d, s%d, v%d' % (a, sSCALE, a))
        E('v_mul_f32 v%d, s%d, v%d' % (b, sSCALE, b))
        E('v_cvt_pk_bf16_f32 v6, v%d, v%d' % (a, b))
        unpack(a, b, 6)

def softmax_merge(n):
    C('softmax merge')
    E('v_max3_f32 v6, v%d, v%d, v%d' % (Sreg(0), Sreg(1), Sreg(2)))
    for t in range(3, n - 1, 2): E('v_max3_f32 v6, v6, v%d, v%d' % (Sreg(t), Sreg(t + 1)))
    E('v_max3_f32 v6, v6, v%d, v19' % Sreg(n - 1))
    rows_allreduce(6, 7, 'max')
    E('v_sub_f32 v8, v19, v6')
    E('v_mul_f32 v8, s%d, v8' % sLOG2E)
    E('v_exp_f32 v8, v8')
    E('v_mul_f32 v7, s%d, v6' % sLOG2E)
    E('v_mov_b32 v19, v6')
    for t in range(n): E('v_fma_f32 v%d, v%d, s%d, -v7' % (Sreg(t), Sreg(t), sLOG2E))
    for t in range(n): E('v_exp_f32 v%d, v%d' % (Sreg(t), Sreg(t)))
    for k in range(8): E('v_mul_f32 v%d, v%d, v8' % (10 + k, 10 + k))
    E('v_fma_f32 v20, v20, v8, v%d' % Sreg(0))
    E('v_add_f32 v9, v%d, v%d' % (Sreg(1), Sreg(2)))
    for t in range(3, n - 1, 2):
        E('v_add_f32 v20, v20, v%d' % Sreg(t))
        E('v_add_f32 v9, v9, v%d' % Sreg(t + 1))
    E('v_add_f32 v20, v20, v%d' % Sreg(n - 1))
    E('v_add_f32 v20, v20, v9')
    for i in range(n // 2): E('v_cvt_pk_bf16_f32 v%d, v%d, v%d' % (2 + i, Sreg(2 * i), Sreg(2 * i + 1)))
def load_q():
    E('v_and_b32 v6, 15, v0')
    E('v_lshlrev_b32 v6, 4, v6')
    E('ds_read_b128 v[2:5], v6 offset:%d' % L_QBF)
    E('s_waitcnt lgkmcnt(0)')

L('L_chunk')
for t in range(16): kv_load('K', t, K0 + 4 * t)
for t in range(10): kv_load('V', t, Vreg(t))
qwait('a')
load_q()
stamp(1)
k_batch(0); k_batch(1); k_batch(2)
kv_load('V', 10, Vreg(10)); kv_load('V', 11, Vreg(11))
k_batch(3)
for t in range(12, 16): kv_load('V', t, Vreg(t))
stamp(2)
softmax_merge(16)
stamp(3)
for p in range(8):
    wait_for('V%d' % (2 * p + 1))
    pair_gemv(Vreg(2 * p), Vreg(2 * p + 1), 2 + p, 10, 64)
E('s_branch L_done')
L('L_claim0')
qwait('b')
E('s_cmp_eq_u32 s%d, 0' % sW)
E('s_cbranch_scc0 L_ccd')
C('wave 15: all WGs have finished their resets?')
E('v_and_b32 v6, 31, v0')
E('v_lshlrev_b32 v6, 3, v6')
L('L_cc')
E('buffer_load_dword v23, v6, %s, 0 offen sc1' % srd(S_DBG))
E('s_waitcnt vmcnt(0)')
E('v_and_b32 v23, 0xffff, v23')
E('v_cmp_gt_u32 vcc, 8, v23')
E('s_cbranch_vccz L_ccd')
spin_guard('L_ccd')
E('s_sleep 16')
E('s_branch L_cc')
L('L_ccd')
q[:] = []
claim()
E('s_branch L_next')
L('L_small')
def kv_small(which, t, reg):
    E('s_add_u32 s6, s3, %d' % (t * 1024))
    E('s_and_b32 s6, s6, 0x1fff')
    E('s_add_u32 s6, s6, s%d' % sKV)
    issue('%s%d' % (which, t), 'buffer_load_dwordx4 %s, v1, %s, s6 offen %s' % (vr(reg, 4), srd(S_K if which == 'K' else S_V), KVFLAG))
q[:] = []
for t in range(8): kv_small('K', t, K0 + 4 * t)
for t in range(8): kv_small('V', t, Vreg(t))
if PREF: claim()
load_q()
k_batch(0); k_batch(1)
softmax_merge(8)
for p in range(4):
    wait_for('V%d' % (2 * p + 1))
    pair_gemv(Vreg(2 * p), Vreg(2 * p + 1), 2 + p, 10, 64)
if not PREF: claim()
L('L_next')
wait_for('CLAIM')
E('v_readfirstlane_b32 s6, v23')
E('s_nop 1')
E('s_cmp_lt_u32 s6, %d' % (2 * POOL))
E('s_cbranch_scc0 L_done')
E('s_add_u32 s6, s6, %d' % (8 * NS))
E('s_lshl_b32 s6, s6, 13')
E('s_lshl_b32 s%d, s%d, 20' % (sKV, sBH))
E('s_add_u32 s%d, s%d, s6' % (sKV, sKV))
E('s_branch L_small')
L('L_idle')
E('s_waitcnt vmcnt(0)')
L('L_done')
E('s_setprio 1')
rows_allreduce(20, 6, 'add')
E('s_lshl_b32 s6, s%d, 3' % sW)
E('v_mov_b32 v6, s6')
E('v_mov_b32 v8, v19')
E('v_mov_b32 v9, v20')
E('s_mov_b64 exec, 1')
E('ds_write_b64 v6, v[8:9] offset:%d' % L_ML)
E('s_mov_b64 exec, -1')
acc8_rows_reduce(10)
E('ds_write_b64 v21, v[10:11] offset:%d' % L_QP)
E('s_waitcnt lgkmcnt(0)')
E('s_barrier')
stamp(4)
E('s_cmp_eq_u32 s%d, 0' % sW)
E('s_cbranch_scc0 L_t1')
C('wave 0: publish O partial')
E('v_and_b32 v14, 15, v0')
E('v_lshlrev_b32 v14, 3, v14')
E('ds_read_b64 v[16:17], v14 offset:%d' % L_ML)
E('v_and_b32 v2, 31, v0')
E('v_lshlrev_b32 v2, 4, v2')
E('v_lshrrev_b32 v3, 5, v0')
E('v_lshl_add_u32 v4, v3, 12, v2')
for i in range(8): E('ds_read_b128 %s, v4 offset:%d' % (vr(24 + 4 * i, 4), L_QP + i * 512))
E('s_waitcnt lgkmcnt(8)')
E('v_mov_b32 v19, v16')
row_allreduce(19, 'max')
E('v_sub_f32 v16, v16, v19')
E('v_mul_f32 v16, s%d, v16' % sLOG2E)
E('v_exp_f32 v16, v16')
E('s_nop 0')
E('v_mul_f32 v20, v16, v17')
row_allreduce(20, 'add')
E('v_mov_b32 v17, v16')
E('s_nop 1')
E('v_mov_b32_dpp v17, v16 row_ror:8 row_mask:0xc bank_mask:0xf')
E('s_nop 1')
for i in range(8): E('v_mov_b32_dpp v%d, v17 row_newbcast:%d%s' % (56 + i, i, DPP))
E('s_waitcnt lgkmcnt(0)')
for k in range(4): E('v_mul_f32 v%d, v%d, v56' % (24 + k, 24 + k))
for i in range(1, 8):
    for k in range(4): E('v_fmac_f32 v%d, v%d, v%d' % (24 + k, 24 + 4 * i + k, 56 + i))
half_combine(24)
E('v_lshl_add_u32 v2, v3, 3, v2')
E('s_lshl_b32 s6, s%d, 12' % sH)
E('s_lshl_b32 s7, s%d, 9' % sR)
E('s_add_u32 s6, s6, s7')
E('s_add_u32 s6, s6, %d' % O_B)
E('buffer_store_dwordx2 v[24:25], v2, %s, s6 offen sc1' % srd(S_WS))
E('v_mov_b32 v16, v19')
E('v_mov_b32 v17, v20')
E('s_lshl_b32 s6, s%d, 7' % sH)
E('s_lshl_b32 s7, s%d, 3' % sR)
E('s_add_u32 s6, s6, s7')
E('s_add_u32 s6, s6, %d' % ML_B)
E('s_mov_b64 exec, 1')
E('buffer_store_dwordx2 v[16:17], v1, %s, s6 offen sc1' % srd(S_WS))
stamp(5)
if int(OPT.get('b4x', 1)): E('s_barrier')
E('s_endpgm')


SLP = int(OPT.get('slp', 0))
DRY = int(OPT.get('dry', 1))
def masked_poll(tag, loads, tmp, thr=None, slp=0):
    regs = []
    for (d, n, va, sr, so, im) in loads: regs += list(range(d, d + n))
    L('L_%spoll' % tag)
    for i, (d, n, va, sr, so, im) in enumerate(loads):
        op = {1: 'dword', 2: 'dwordx2', 4: 'dwordx4'}[n]
        E('buffer_load_%s %s, v%d, %s, s%d offen offset:%d sc1' % (op, vr(d, n) if n > 1 else 'v%d' % d, va, srd(sr), so, im))
    nl = len(loads)
    first = [True, True]
    for i, (d, n, va, sr, so, im) in enumerate(loads):
        E('s_waitcnt vmcnt(%d)' % (nl - 1 - i))
        t = tmp + (i & 1)
        assert n == 4
        if first[i & 1]:
            E('v_max3_u32 v%d, v%d, v%d, v%d' % (t, d, d + 1, d + 2))
            E('v_max_u32 v%d, v%d, v%d' % (t, t, d + 3))
            first[i & 1] = False
        else:
            E('v_max3_u32 v%d, v%d, v%d, v%d' % (t, t, d, d + 1))
            E('v_max3_u32 v%d, v%d, v%d, v%d' % (t, t, d + 2, d + 3))
    E('v_max_u32 v%d, v%d, v%d' % (tmp, tmp, tmp + 1))
    E('v_cmp_eq_u32 vcc, -1, v%d' % tmp)
    E('s_cbranch_vccz L_%sgo' % tag)
    E('s_mov_b64 exec, vcc')
    spin_guard('L_%sgo' % tag)
    if thr is not None:
        E('s_bcnt1_i32_b64 s4, vcc')
        E('s_cmp_le_u32 s4, %d' % thr)
        E('s_cbranch_scc1 L_%spoll' % tag)
        E('s_sleep %d' % slp)
    E('s_branch L_%spoll' % tag)
    L('L_%sgo' % tag)
    E('s_mov_b64 exec, -1')

L('L_t1')
if TS == 2:
    E('s_cmp_eq_u32 s%d, 5' % sW)
    E('s_cbranch_scc0 L_t2x')
    stamp(26)
    L('L_t2x')
if int(OPT.get('b4x', 1)): E('s_barrier')
E('s_cmp_eq_u32 s%d, 7' % sW)
E('s_cbranch_scc0 L_t1b')
C('wave 7: gather O partials of this head, combine, bf16 -> LDS')
E('v_lshrrev_b32 v4, 5, v0')
E('v_and_b32 v5, 31, v0')
E('v_lshlrev_b32 v6, 11, v4')
E('v_lshl_add_u32 v6, v5, 4, v6')
E('v_lshlrev_b32 v7, 5, v4')
E('s_lshl_b32 s8, s%d, 12' % sH)
E('s_add_u32 s8, s8, %d' % O_B)
E('s_lshl_b32 s9, s%d, 7' % sH)
E('s_add_u32 s9, s9, %d' % ML_B)
E('v_lshlrev_b32 v12, 8, v4')
E('v_lshl_add_u32 v12, v5, 3, v12')
masked_poll('y', [(48 + 4 * i, 4, 6, S_WS, 8, i * 512) for i in range(4)] + [(64, 4, 7, S_WS, 9, 0), (68, 4, 7, S_WS, 9, 16)], 22)
stamp(6)
E('v_max3_f32 v8, v64, v66, v68')
E('v_max_f32 v8, v8, v70')
for i in range(4):
    E('v_sub_f32 v%d, v%d, v8' % (64 + 2 * i, 64 + 2 * i))
    E('v_mul_f32 v%d, s%d, v%d' % (64 + 2 * i, sLOG2E, 64 + 2 * i))
    E('v_exp_f32 v%d, v%d' % (64 + 2 * i, 64 + 2 * i))
E('s_nop 0')
E('v_mul_f32 v9, v64, v65')
for i in range(1, 4): E('v_fmac_f32 v9, v%d, v%d' % (64 + 2 * i, 65 + 2 * i))
E('v_rcp_f32 v9, v9')
for k in range(4): E('v_mul_f32 v%d, v64, v%d' % (48 + k, 48 + k))
for i in range(1, 4):
    for k in range(4): E('v_fmac_f32 v%d, v%d, v%d' % (48 + k, 64 + 2 * i, 48 + 4 * i + k))
for k in range(4): E('v_mul_f32 v%d, v9, v%d' % (48 + k, 48 + k))
E('v_cvt_pk_bf16_f32 v10, v48, v49')
E('v_cvt_pk_bf16_f32 v11, v50, v51')
E('ds_write_b64 v12, v[10:11] offset:%d' % L_OBF)
E('s_waitcnt lgkmcnt(0)')
E('s_barrier')
E('s_endpgm')

L('L_t1b')
E('s_cmp_lt_u32 s%d, 5' % sW)
E('s_cbranch_scc0 L_t2')
E('s_cmp_lt_u32 s%d, 5' % sR)
E('s_cbranch_scc0 L_end')
C('waves 1..4: two y tiles each')
E('s_sub_u32 s15, s%d, 1' % sW)
E('v_lshrrev_b32 v2, 4, v0')
E('v_bfe_u32 v3, v0, 2, 2')
E('v_lshl_add_u32 v3, v2, 3, v3')
E('v_lshlrev_b32 v3, 8, v3')
E('v_and_b32 v4, 3, v0')
E('v_lshl_add_u32 v3, v4, 3, v3')
E('s_lshl_b32 s6, s15, 6')
E('v_add_u32 v3, s6, v3')
for tl in range(2):
    for s in range(4):
        for hf in range(2):
            E('ds_read_b64_tr_b16 %s, v3 offset:%d' % (vr(32 + 16 * tl + 4 * s + 2 * hf, 2), L_WO + s * 8192 + hf * 1024 + tl * 32))
E('v_and_b32 v13, 1, v0')
E('v_lshlrev_b32 v13, 8, v13')
E('v_lshl_add_u32 v13, v2, 4, v13')
E('s_lshl_b32 s6, s%d, 15' % sR)
E('s_lshl_b32 s7, s15, 13')
E('s_add_u32 s6, s6, s7')
E('s_lshl_b32 s7, s%d, 7' % sH)
E('s_add_u32 s6, s6, s7')
E('s_add_u32 s6, s6, %d' % Y_B)
E('s_add_u32 s7, s6, 4096')
E('v_and_b32 v14, 15, v0')
E('v_lshlrev_b32 v14, 6, v14')
E('v_lshl_add_u32 v14, v2, 4, v14')
E('s_waitcnt lgkmcnt(0)')
E('s_barrier')
for s in range(4): E('ds_read_b128 %s, v13 offset:%d' % (vr(72 + 4 * s, 4), L_OBF + 64 * s))
for s in range(4):
    E('s_waitcnt lgkmcnt(%d)' % (3 - s))
    E('v_mfma_f32_16x16x32_bf16 v[88:91], %s, %s, %s' % (vr(32 + 4 * s, 4), vr(72 + 4 * s, 4), '0' if s == 0 else 'v[88:91]'))
    E('v_mfma_f32_16x16x32_bf16 v[92:95], %s, %s, %s' % (vr(48 + 4 * s, 4), vr(72 + 4 * s, 4), '0' if s == 0 else 'v[92:95]'))
E('s_nop 4')
E('s_mov_b32 exec_lo, 0x30003')
E('s_mov_b32 exec_hi, 0x30003')
E('buffer_store_dwordx4 v[88:91], v14, %s, s6 offen sc1' % srd(S_WS))
E('buffer_store_dwordx4 v[92:95], v14, %s, s7 offen sc1' % srd(S_WS))
stamp(7)
E('s_endpgm')

def two_val_xor16(a, b, t0, t1):
    E('v_mov_b32 v%d, v%d' % (t0, a))
    E('v_mov_b32 v%d, v%d' % (t1, b))
    E('s_nop 1')
    E('v_permlane16_swap_b32 v%d, v%d' % (a, t0))
    E('v_permlane16_swap_b32 v%d, v%d' % (b, t1))
    E('v_add_f32 v%d, v%d, v%d' % (a, a, t0))
    E('v_add_f32 v%d, v%d, v%d' % (b, b, t1))

def res_add_pack(R, X):
    E('v_cvt_pk_bf16_f32 v%d, v%d, v%d' % (R + 2, R, R + 1))
    unpack(R, R + 1, R + 2)
    unpack(5, 6, X)
    E('v_add_f32 v%d, v%d, v5' % (R, R))
    E('v_add_f32 v%d, v%d, v6' % (R + 1, R + 1))
    E('v_cvt_pk_bf16_f32 v%d, v%d, v%d' % (R + 2, R, R + 1))

def h_slice_setup(sSIG):
    E('v_bfe_u32 v10, v0, 2, 1')
    E('v_mul_u32_u24 v10, 1280, v10')
    E('v_and_b32 v11, 3, v0')
    E('v_lshl_add_u32 v10, v11, 3, v10')
    E('v_lshrrev_b32 v11, 5, v0')
    E('v_lshl_add_u32 v10, v11, 2, v10')
    E('s_lshl_b32 s8, s%d, 5' % sSIG)
    E('buffer_load_dword v4, v10, %s, s8 offen' % srd(S_X))
    E('s_lshl_b32 s9, s%d, 12' % sSIG)
    E('s_add_u32 s9, s9, %d' % Y_B)

def h_slice(tag, R):
    masked_poll(tag, [(R + 4 * i, 4, 1, S_WS, 9, i * 1024) for i in range(4)], 22, int(OPT.get('ythr', 40)), int(OPT.get('yslp', 16)))
    stamp(8)
    for k in range(4):
        E('v_add_f32 v%d, v%d, v%d' % (R + k, R + k, R + 4 + k))
        E('v_add_f32 v%d, v%d, v%d' % (R + 8 + k, R + 8 + k, R + 12 + k))
    for k in range(4): E('v_add_f32 v%d, v%d, v%d' % (R + k, R + k, R + 8 + k))
    E('s_nop 0')
    for k in range(4): E('v_add_f32_dpp v%d, v%d, v%d row_ror:8%s' % (R + k, R + k, R + k, DPP))
    half_combine(R)
    two_val_xor16(R, R + 1, R + 2, R + 3)
    res_add_pack(R, 4)

L('L_t2')
E('s_cmp_eq_u32 s%d, 6' % sW)
E('s_cbranch_scc0 L_t3')
E('s_cmp_eq_u32 s%d, 1' % sTEAM)
E('s_cbranch_scc1 L_stats')
E('s_cmp_eq_u32 s%d, 3' % sROLE)
E('s_cbranch_scc0 L_end')
C('wave 6: final reducer')
E('s_cmp_ge_u32 s%d, 40' % sIDX)
E('s_cselect_b32 s12, 1, 0')
E('s_mul_i32 s7, s12, 40')
E('s_sub_u32 s13, s%d, s7' % sIDX)
h_slice_setup(13)
E('s_barrier')
E('s_barrier')
h_slice('e', 64)
E('v_and_b32 v3, 35, v0')
E('s_lshl_b32 s6, s12, 2')
E('v_add_u32 v3, s6, v3')
E('v_lshlrev_b32 v3, 2, v3')
E('ds_bpermute_b32 v4, v3, v66')
E('s_mul_i32 s8, s12, 1280')
E('s_lshl_b32 s7, s13, 5')
E('s_add_u32 s8, s8, s7')
E('v_and_b32 v3, 3, v0')
E('v_lshlrev_b32 v2, 3, v3')
E('v_lshrrev_b32 v3, 5, v0')
E('v_lshl_add_u32 v2, v3, 2, v2')
E('s_mul_i32 s9, s%d, %d' % (sIDX, ZS))
E('s_add_u32 s9, s9, %d' % Z_B)
E('s_add_u32 s10, s9, 4096')
E('s_mov_b32 s%d, s38' % S_A)
E('s_mov_b32 s%d, s39' % (S_A + 1))
E('s_add_u32 s%d, s9, %d' % (S_A + 2, ZS))
E('s_mov_b32 s%d, 0x20000' % (S_A + 3))
E('s_waitcnt lgkmcnt(0)')
E('s_barrier')
E('s_barrier')
if int(OPT.get('fslp', 0)): E('s_sleep %d' % int(OPT.get('fslp', 0)))
masked_poll('f', [(32 + 4 * i, 4, 1, S_A, 9 if i < 4 else 10, (i & 3) * 1024) for i in range(7)], 22)
stamp(14)
for k in range(4):
    E('v_add_f32 v%d, v%d, v%d' % (32 + k, 32 + k, 36 + k))
    E('v_add_f32 v%d, v%d, v%d' % (40 + k, 40 + k, 44 + k))
    E('v_add_f32 v%d, v%d, v%d' % (48 + k, 48 + k, 52 + k))
for k in range(4):
    E('v_add_f32 v%d, v%d, v%d' % (32 + k, 32 + k, 40 + k))
    E('v_add_f32 v%d, v%d, v%d' % (48 + k, 48 + k, 56 + k))
for k in range(4): E('v_add_f32 v%d, v%d, v%d' % (32 + k, 32 + k, 48 + k))
E('s_nop 0')
for k in range(4): E('v_add_f32_dpp v%d, v%d, v%d row_ror:4%s' % (32 + k, 32 + k, 32 + k, DPP))
for k in range(4): E('v_add_f32_dpp v%d, v%d, v%d row_ror:8%s' % (32 + k, 32 + k, 32 + k, DPP))
half_combine(32)
two_val_xor16(32, 33, 34, 35)
res_add_pack(32, 4)
E('s_mov_b32 exec_lo, 0xf')
E('s_mov_b32 exec_hi, 0xf')
E('buffer_store_dword v34, v2, %s, s8 offen' % srd(S_OUT))
stamp(15)
E('s_endpgm')

L('L_t3')
E('s_cmp_lt_u32 s%d, 8' % sW)
E('s_cbranch_scc1 L_end')
E('s_sub_u32 s15, s%d, 8' % sW)
E('v_lshrrev_b32 v2, 4, v0')
E('v_bfe_u32 v3, v0, 2, 2')
E('v_and_b32 v7, 3, v0')
E('s_cmp_eq_u32 s%d, 1' % sTEAM)
E('s_cbranch_scc0 L_t4')
C('F1 team: h slice -> raw partial gate/up products, column sums, stats')
E('s_and_b32 s13, s15, 1')
E('s_lshr_b32 s14, s15, 1')
E('v_lshl_add_u32 v5, v2, 3, v3')
E('v_lshlrev_b32 v5, 7, v5')
E('v_lshl_add_u32 v5, v7, 3, v5')
E('s_lshl_b32 s6, s13, 14')
E('s_lshl_b32 s7, s14, 5')
E('s_add_u32 s6, s6, s7')
E('v_add_u32 v5, s6, v5')
for s in range(4):
    for hf in range(2):
        E('ds_read_b64_tr_b16 %s, v5 offset:%d' % (vr(32 + 4 * s + 2 * hf, 2), L_F + s * 4096 + hf * 512))
E('v_mov_b32 v12, 0x3f803f80')
E('v_lshlrev_b32 v13, 2, v0')
E('ds_write_b32 v13, v12 offset:%d' % (L_L2 + 512))
E('v_and_b32 v12, 15, v0')
E('v_min_u32 v12, 2, v12')
E('v_lshlrev_b32 v12, 8, v12')
E('v_lshl_add_u32 v15, v2, 4, v12')
E('s_lshl_b32 s8, s%d, 2' % sTIDX)
E('s_add_u32 s12, s14, s8')
E('s_mul_i32 s12, s12, 2560')
E('s_lshl_b32 s7, s%d, 9' % sKAP)
E('s_add_u32 s12, s12, s7')
E('s_mul_i32 s8, s13, 192')
E('s_add_u32 s12, s12, s8')
E('s_add_u32 s12, s12, %d' % G_B)
E('v_and_b32 v14, 15, v0')
E('v_lshlrev_b32 v14, 6, v14')
E('v_lshl_add_u32 v14, v2, 4, v14')
E('s_lshl_b32 s10, s%d, 3' % sKAP)
E('s_add_u32 s10, s10, s15')
h_slice_setup(10)
E('v_bfe_u32 v16, v0, 2, 1')
E('v_lshlrev_b32 v16, 8, v16')
E('v_lshl_add_u32 v16, v7, 3, v16')
E('v_lshl_add_u32 v16, v11, 2, v16')
E('s_lshl_b32 s6, s15, 5')
E('v_add_u32 v16, s6, v16')
E('s_barrier')
E('s_barrier')
if int(OPT.get('nslp', 0)): E('s_sleep %d' % int(OPT.get('nslp', 0)))
h_slice('n', 64)
E('ds_write_b32 v16, v66 offset:%d' % L_L2)
E('s_waitcnt lgkmcnt(0)')
E('s_barrier')
stamp(11)
for s in range(4): E('ds_read_b128 %s, v15 offset:%d' % (vr(64 + 4 * s, 4), L_L2 + 64 * s))
for s in range(4):
    E('s_waitcnt lgkmcnt(%d)' % (3 - s))
    E('v_mfma_f32_16x16x32_bf16 v[88:91], %s, %s, %s' % (vr(32 + 4 * s, 4), vr(64 + 4 * s, 4), '0' if s == 0 else 'v[88:91]'))
E('s_nop 5')
E('s_mov_b32 exec_lo, 0x70007')
E('s_mov_b32 exec_hi, 0x70007')
E('buffer_store_dwordx4 v[88:91], v14, %s, s12 offen sc1' % srd(S_WS))
stamp(23)
E('s_endpgm')
L('L_stats')
C('wave 6 of F1 WGs: stats of the 128-slice')
E('s_mul_i32 s11, s%d, 10240' % sTIDX)
E('s_lshl_b32 s7, s%d, 9' % sKAP)
E('s_add_u32 s11, s11, s7')
E('s_add_u32 s11, s11, %d' % (G_B + 384))
E('v_and_b32 v7, 3, v0')
E('v_lshrrev_b32 v11, 5, v0')
E('v_mul_u32_u24 v16, 2560, v7')
E('v_lshl_add_u32 v16, v11, 4, v16')
E('v_lshlrev_b32 v17, 3, v0')
E('v_mov_b32 v106, 0')
E('v_mov_b32 v107, 0')
E('s_barrier')
E('s_barrier')
E('s_barrier')
E('ds_read_b64 v[96:97], v17 offset:%d' % L_L2)
E('s_waitcnt lgkmcnt(0)')
unpack(100, 101, 96)
unpack(102, 103, 97)
E('v_add_f32 v104, v100, v101')
E('v_add_f32 v105, v102, v103')
E('v_add_f32 v104, v104, v105')
def half_allreduce(v, t):
    row_allreduce(v, 'add')
    E('v_mov_b32 v%d, v%d' % (t, v))
    E('s_nop 1')
    E('v_permlane16_swap_b32 v%d, v%d' % (v, t))
    E('v_add_f32 v%d, v%d, v%d' % (v, v, t))
half_allreduce(104, 105)
E('v_mul_f32 v104, 0x3c000000, v104')
for k in range(4): E('v_sub_f32 v%d, v%d, v104' % (100 + k, 100 + k))
E('v_mul_f32 v105, v100, v100')
E('v_mul_f32 v98, v102, v102')
E('v_fmac_f32 v105, v101, v101')
E('v_fmac_f32 v98, v103, v103')
E('v_add_f32 v105, v105, v98')
half_allreduce(105, 98)
E('s_mov_b32 exec_lo, 0xf')
E('s_mov_b32 exec_hi, 0xf')
E('buffer_store_dwordx4 v[104:107], v16, %s, s11 offen sc1' % srd(S_WS))
stamp(25)
E('s_endpgm')

L('L_t4')
E('s_cmp_eq_u32 s%d, 2' % sTEAM)
E('s_cbranch_scc0 L_end')
C('F2 team: LN fixup, hm, down partial')
E('v_lshl_add_u32 v6, v2, 2, v3')
E('v_mul_u32_u24 v6, 1280, v6')
E('v_lshl_add_u32 v6, v7, 3, v6')
E('s_mul_i32 s6, s15, 160')
E('v_add_u32 v6, s6, v6')
for t in range(5): E('ds_read_b64_tr_b16 %s, v6 offset:%d' % (vr(52 + 2 * t, 2), L_F + t * 32))
E('s_mul_i32 s9, s%d, 2560' % sTIDX)
E('s_add_u32 s9, s9, %d' % G_B)
E('s_mul_i32 s6, s15, %d' % (5 * ZS))
E('s_lshl_b32 s7, s%d, 6' % sTIDX)
E('s_add_u32 s12, s6, s7')
E('s_add_u32 s12, s12, %d' % Z_B)
E('v_and_b32 v14, 1, v0')
E('v_mul_u32_u24 v14, %d, v14' % (40 * ZS))
E('v_lshl_add_u32 v14, v2, 4, v14')
E('v_min_u32 v9, 25, v0')
E('v_lshlrev_b32 v9, 4, v9')
E('v_and_b32 v16, 1, v0')
E('v_lshlrev_b32 v17, 6, v16')
E('v_lshl_add_u32 v17, v2, 4, v17')
E('v_lshlrev_b32 v19, 4, v2')
E('v_lshlrev_b32 v20, 4, v16')
E('v_mov_b32 v90, 0x43000000')
E('s_barrier')
E('s_barrier')
E('s_cmp_eq_u32 s15, 0')
E('s_cbranch_scc0 L_gb')
masked_poll('g', [(64 + 4 * i, 4, 9, S_WS, 9, i * 512) for i in range(5)], 22)
stamp(24)
for k in range(4):
    E('v_add_f32 v%d, v%d, v%d' % (84 + k, 64 + k, 68 + k))
    E('v_add_f32 v%d, v%d, v%d' % (96 + k, 72 + k, 76 + k))
for k in range(4): E('v_add_f32 v%d, v%d, v%d' % (84 + k, 84 + k, 80 + k))
for k in range(4): E('v_add_f32 v%d, v%d, v%d' % (84 + k, 84 + k, 96 + k))
E('ds_write_b128 v9, v[84:87] offset:%d' % L_P)
E('v_mul_f32 v92, 0x3e4ccccd, v84')
for i in range(5): E('v_sub_f32 v%d, v%d, v92' % (96 + i, 64 + 4 * i))
E('v_mul_f32 v88, v96, v96')
E('v_mul_f32 v89, v97, v97')
E('v_fmac_f32 v88, v98, v98')
E('v_fmac_f32 v89, v99, v99')
E('v_fmac_f32 v88, v100, v100')
E('v_add_f32 v88, v88, v89')
E('v_fma_f32 v93, v88, v90, v85')
E('v_mul_f32 v93, 0x3acccccd, v93')
E('v_cvt_pk_bf16_f32 v94, v92, v93')
unpack(92, 93, 94)
E('v_add_f32 v93, 0x3727c5ac, v93')
rne_bf16(93)
E('v_sqrt_f32 v93, v93')
E('s_nop 0')
rne_bf16(93)
E('v_rcp_f32 v93, v93')
E('s_mov_b32 exec_lo, 0x3000000')
E('s_mov_b32 exec_hi, 0')
E('ds_write_b64 v9, v[92:93] offset:%d' % (L_P + 128))
E('s_mov_b64 exec, -1')
L('L_gb')
E('s_waitcnt lgkmcnt(0)')
E('s_barrier')
E('ds_read_b128 v[64:67], v17 offset:%d' % L_P)
E('ds_read_b128 v[68:71], v19 offset:%d' % (L_P + 128))
E('ds_read_b128 v[72:75], v17 offset:%d' % (L_P + 192))
E('ds_read_b128 v[76:79], v19 offset:%d' % (L_P + 320))
E('ds_read_b64 v[80:81], v20 offset:%d' % (L_P + 512))
E('s_waitcnt lgkmcnt(0)')
for k in range(4):
    E('v_fma_f32 v%d, -v80, v%d, v%d' % (64 + k, 68 + k, 64 + k))
    E('v_fma_f32 v%d, -v80, v%d, v%d' % (72 + k, 76 + k, 72 + k))
for k in range(4):
    E('v_mul_f32 v%d, v%d, v81' % (64 + k, 64 + k))
    E('v_mul_f32 v%d, v%d, v81' % (72 + k, 72 + k))
for j, base in enumerate((64, 66, 72, 74)): E('v_cvt_pk_bf16_f32 v%d, v%d, v%d' % (84 + j, base, base + 1))
for j, base in enumerate((64, 66, 72, 74)): unpack(base, base + 1, 84 + j)
for k in range(4): E('v_mul_f32 v%d, v%d, v%d' % (64 + k, 64 + k, 72 + k))
E('v_cvt_pk_bf16_f32 v10, v64, v65')
E('v_cvt_pk_bf16_f32 v11, v66, v67')
E('s_nop 1')
for t in range(5): E('v_mfma_f32_16x16x16_bf16 %s, %s, v[10:11], 0' % (vr(104 + 4 * t, 4), vr(52 + 2 * t, 2)))
E('s_nop 1')
E('s_mov_b32 exec_lo, 0x30003')
E('s_mov_b32 exec_hi, 0x30003')
for t in range(5):
    E('buffer_store_dwordx4 %s, v14, %s, s12 offen sc1' % (vr(104 + 4 * t, 4), srd(S_WS)))
    if t < 4: E('s_add_u32 s12, s12, %d' % ZS)
stamp(12)
L('L_end')
E('s_endpgm')
out.append('.section .rodata,"a"')
out.append('.p2align 6')
out.append('.amdhsa_kernel %s' % NAME)
out.append('  .amdhsa_next_free_vgpr 128')
out.append('  .amdhsa_next_free_sgpr 102')
out.append('  .amdhsa_accum_offset 128')
out.append('  .amdhsa_group_segment_fixed_size 0')
out.append('  .amdhsa_kernarg_size 96')
out.append('  .amdhsa_user_sgpr_count 2')
out.append('  .amdhsa_user_sgpr_kernarg_segment_ptr 1')
out.append('  .amdhsa_system_sgpr_workgroup_id_x 1')
out.append('  .amdhsa_float_denorm_mode_32 3')
out.append('.end_amdhsa_kernel')
print('\n'.join(out))
```

```python
import sys

NAME = 'sequential_preLN__mha_block_cached__glu_gated_bilinear__decode_kernel'
OPT = dict(a.split('=') for a in sys.argv[1:] if '=' in a)
TS = int(OPT.get('ts', 0))
def flag(k, d):
    v = OPT.get(k, d)
    return '' if v == '-' else v.replace('+', ' ')
KVFLAG = flag('kv', 'nt')
KFLAG = flag('k', OPT.get('kv', 'nt'))
VFLAG = flag('v', OPT.get('kv', 'nt'))
WFLAG = flag('w', 'nt')
WQFLAG = flag('wq', '-')
D = int(OPT.get('d', 6))
D1 = int(OPT.get('d1', 8))
DMAPOS = OPT.get('dma', 'end')

out = []
def E(s): out.append('  ' + s)
def L(s): out.append(s + ':')
def C(s): out.append('  ; ' + s)

ML_B = 0x0
O_B = 0x10000
Y_B = 0x40000
H_B = 0x80000
Z_B = 0x100000
ZS = 108 * 64
TS_B = 0x800000
WS_BYTES = 0x10000000
L_QP = 0x0
L_QBF = 0x2000
L_ML = 0x2100
L_OBF = 0x2200
L_L2 = 0x2C00
L_P = 0x3600
L_DUMMY = 0x3A00
L_FLAG = 0x2180
L_HM = 0x3C00
sDRY = 84
L_WO = 0x4000
L_F = 0xC000
LDS_BYTES = 0x14000
G_B = 0x300000

S_K, S_V, S_WQ, S_WS, S_X, S_A, S_B, S_DBG, S_OUT = 40, 44, 48, 52, 56, 60, 64, 68, 72
S_C = 48
sTEAM, sTIDX, sKAP = 89, 90, 97
sW, sH, sBb, sQT, sR, sKV, sROLE, sIDX, sMU, sXCD = 76, 77, 78, 79, 80, 81, 82, 83, 84, 85
sSELLO, sSELHI, sSPIN, sT2, sT3 = 86, 87, 88, 91, 92
sSCALE, sLOG2E, sBH, sWQO = 93, 94, 95, 96
sTS = 98

def srd(n): return 's[%d:%d]' % (n, n + 3)
def vr(a, n): return 'v[%d:%d]' % (a, a + n - 1)
DPP = ' row_mask:0xf bank_mask:0xf'
BFLY = ('quad_perm:[1,0,3,2]', 'quad_perm:[2,3,0,1]', 'row_half_mirror', 'row_mirror')

def stamp(idx, va=18, vd=22):
    if not TS: return
    if TS == 2 and idx not in (0, 26, 15): return
    E('s_memrealtime s[%d:%d]' % (sTS, sTS + 1))
    E('s_waitcnt lgkmcnt(0)')
    E('v_mov_b32 v%d, s%d' % (vd, sTS))
    E('s_lshl_b32 s%d, s2, 11' % sT3)
    E('s_lshl_b32 s%d, s%d, 7' % (sT2, sW))
    E('s_add_u32 s%d, s%d, s%d' % (sT3, sT3, sT2))
    E('s_add_u32 s%d, s%d, %d' % (sT3, sT3, TS_B + idx * 4))
    E('v_mov_b32 v%d, s%d' % (va, sT3))
    E('buffer_store_dword v%d, v%d, %s, 0 offen' % (vd, va, srd(S_WS)))

DBGT = int(OPT.get('dbgt', 0))
def dbgstamp(word, invert=False):
    if not DBGT: return
    E('s_memrealtime s[%d:%d]' % (sTS, sTS + 1))
    E('s_waitcnt lgkmcnt(0)')
    if invert: E('s_not_b32 s%d, s%d' % (sTS, sTS))
    E('v_mov_b32 v22, s%d' % sTS)
    E('s_mov_b64 s[100:101], exec')
    E('s_mov_b64 exec, 1')
    E('buffer_atomic_umax v22, off, %s, 0 offset:%d sc1' % (srd(S_DBG), 144 + word * 4))
    E('s_mov_b64 exec, s[100:101]')

def row_allreduce(v, op):
    for step in BFLY:
        E('s_nop 1')
        E('v_%s_f32_dpp v%d, v%d, v%d %s%s' % (op, v, v, v, step, DPP))

def rows_allreduce(v, tmp, op):
    ins = 'v_%s_f32' % op
    E('v_mov_b32 v%d, v%d' % (tmp, v))
    E('s_nop 1')
    E('v_permlane32_swap_b32 v%d, v%d' % (v, tmp))
    E('%s v%d, v%d, v%d' % (ins, v, v, tmp))
    E('v_mov_b32 v%d, v%d' % (tmp, v))
    E('s_nop 1')
    E('v_permlane16_swap_b32 v%d, v%d' % (v, tmp))
    E('%s v%d, v%d, v%d' % (ins, v, v, tmp))

def wave_allreduce(v, tmp, op):
    row_allreduce(v, op)
    rows_allreduce(v, tmp, op)

def rne_bf16(v):
    E('v_cvt_pk_bf16_f32 v%d, v%d, v%d' % (v, v, v))
    E('v_and_b32 v%d, 0xffff0000, v%d' % (v, v))

def unpack(lo, hi, src):
    E('v_lshlrev_b32 v%d, 16, v%d' % (lo, src))
    E('v_and_b32 v%d, 0xffff0000, v%d' % (hi, src))

def layernorm(X, F, T):
    for i in range(5): unpack(F + 2 * i, F + 2 * i + 1, X + i)
    E('v_add_f32 v%d, v%d, v%d' % (T, F, F + 1))
    E('v_add_f32 v%d, v%d, v%d' % (T + 1, F + 2, F + 3))
    for i in (4, 6, 8):
        E('v_add_f32 v%d, v%d, v%d' % (T, T, F + i))
        E('v_add_f32 v%d, v%d, v%d' % (T + 1, T + 1, F + i + 1))
    E('v_add_f32 v%d, v%d, v%d' % (T, T, T + 1))
    wave_allreduce(T, T + 1, 'add')
    E('v_mul_f32 v%d, 0x3acccccd, v%d' % (T, T))
    E('v_sub_f32 v%d, v%d, v%d' % (T + 2, F, T))
    E('v_mul_f32 v%d, v%d, v%d' % (T + 1, T + 2, T + 2))
    for i in range(1, 10):
        E('v_sub_f32 v%d, v%d, v%d' % (T + 2, F + i, T))
        E('v_fmac_f32 v%d, v%d, v%d' % (T + 1, T + 2, T + 2))
    wave_allreduce(T + 1, T + 2, 'add')
    E('v_mul_f32 v%d, 0x3acccccd, v%d' % (T + 1, T + 1))
    rne_bf16(T)
    rne_bf16(T + 1)
    E('v_add_f32 v%d, 0x3727c5ac, v%d' % (T + 1, T + 1))
    rne_bf16(T + 1)
    E('v_sqrt_f32 v%d, v%d' % (T + 1, T + 1))
    E('s_nop 0')
    rne_bf16(T + 1)
    E('v_rcp_f32 v%d, v%d' % (T + 2, T + 1))
    for i in range(5):
        a, b = F + 2 * i, F + 2 * i + 1
        E('v_sub_f32 v%d, v%d, v%d' % (a, a, T))
        E('v_sub_f32 v%d, v%d, v%d' % (b, b, T))
        E('v_cvt_pk_bf16_f32 v%d, v%d, v%d' % (X + i, a, b))
        unpack(a, b, X + i)
        for r in (a, b):
            E('v_mul_f32 v%d, v%d, v%d' % (T + 3, r, T + 2))
            E('v_fma_f32 v%d, -v%d, v%d, v%d' % (r, T + 3, T + 1, r))
            E('v_fma_f32 v%d, v%d, v%d, v%d' % (r, r, T + 2, T + 3))
        E('v_cvt_pk_bf16_f32 v%d, v%d, v%d' % (X + i, a, b))

def pair_gemv(Wa, Wb, Lp, ACC, T, first=False):
    for d in range(4):
        t0, t1 = T + (2 * d) % 4, T + (2 * d + 1) % 4
        E('v_perm_b32 v%d, v%d, v%d, s%d' % (t0, Wb + d, Wa + d, sSELLO))
        E('v_perm_b32 v%d, v%d, v%d, s%d' % (t1, Wb + d, Wa + d, sSELHI))
        if first:
            E('v_dot2_f32_bf16 v%d, v%d, v%d, 0' % (ACC + 2 * d, t0, Lp))
            E('v_dot2_f32_bf16 v%d, v%d, v%d, 0' % (ACC + 2 * d + 1, t1, Lp))
        else:
            E('v_dot2c_f32_bf16 v%d, v%d, v%d' % (ACC + 2 * d, t0, Lp))
            E('v_dot2c_f32_bf16 v%d, v%d, v%d' % (ACC + 2 * d + 1, t1, Lp))

def acc8_rows_reduce(A):
    E('s_nop 2')
    for i in range(4): E('v_permlane32_swap_b32 v%d, v%d' % (A + i, A + 4 + i))
    for i in range(4): E('v_add_f32 v%d, v%d, v%d' % (A + i, A + i, A + 4 + i))
    E('s_nop 0')
    E('v_permlane16_swap_b32 v%d, v%d' % (A, A + 2))
    E('v_permlane16_swap_b32 v%d, v%d' % (A + 1, A + 3))
    E('v_add_f32 v%d, v%d, v%d' % (A, A, A + 2))
    E('v_add_f32 v%d, v%d, v%d' % (A + 1, A + 1, A + 3))

def half_combine(R):
    E('s_nop 1')
    E('v_permlane32_swap_b32 v%d, v%d' % (R, R + 2))
    E('v_permlane32_swap_b32 v%d, v%d' % (R + 1, R + 3))
    E('v_add_f32 v%d, v%d, v%d' % (R, R, R + 2))
    E('v_add_f32 v%d, v%d, v%d' % (R + 1, R + 1, R + 3))

def spin_guard(label_bail):
    E('s_add_u32 s%d, s%d, 1' % (sSPIN, sSPIN))
    E('s_cmp_gt_u32 s%d, 0x40000' % sSPIN)
    E('s_cbranch_scc1 %s' % label_bail)

def build_srd(n, ptr, nbytes):
    E('s_mov_b32 s%d, s%d' % (n, ptr))
    E('s_mov_b32 s%d, s%d' % (n + 1, ptr + 1))
    E('s_mov_b32 s%d, 0x%x' % (n + 2, nbytes))
    E('s_mov_b32 s%d, 0x20000' % (n + 3))

NS = int(OPT.get('ns', 12))
POOL = 64 - 4 * NS
PREF = int(OPT.get('pref', 1))
NWK = int(OPT.get('nwk', 16 - NS))
NSTOP = int(OPT.get('nstop', NS))
QP_B = 0x200000
CNT_B = 0x280000
out.append('; @launch grid=(256,1,1) block=(1024,1,1) lds=%d' % LDS_BYTES)
out.append('.amdgcn_target "amdgcn-amd-amdhsa--gfx950"')
out.append('.text')
out.append('.globl %s' % NAME)
out.append('.p2align 8')
out.append('.type %s,@function' % NAME)
L(NAME)
E('s_cmp_ge_u32 s2, 256')
E('s_cbranch_scc1 L_end')
E('s_load_dwordx16 s[16:31], s[0:1], 0')
E('s_load_dwordx8 s[32:39], s[0:1], 64')
E('v_lshrrev_b32 v3, 6, v0')
E('v_and_b32 v0, 63, v0')
E('v_readfirstlane_b32 s%d, v3' % sW)
E('v_lshlrev_b32 v1, 4, v0')
E('s_lshr_b32 s%d, s2, 3' % sH)
E('s_add_u32 s%d, s2, s%d' % (sR, sH))
E('s_and_b32 s%d, s%d, 7' % (sR, sR))
E('s_lshr_b32 s%d, s%d, 2' % (sBb, sR))
E('s_and_b32 s%d, s%d, 3' % (sQT, sR))
E('s_lshl_b32 s%d, s%d, 5' % (sBH, sBb))
E('s_add_u32 s%d, s%d, s%d' % (sBH, sBH, sH))
E('s_mul_i32 s6, s%d, %d' % (sQT, NS))
E('s_add_u32 s6, s6, s%d' % sW)
E('s_sub_u32 s6, s6, 1')
E('s_lshl_b32 s6, s6, 14')
E('s_lshl_b32 s%d, s%d, 20' % (sKV, sBH))
E('s_add_u32 s%d, s%d, s6' % (sKV, sKV))
E('s_mov_b32 s%d, 0' % sTEAM)
E('s_mul_i32 s6, s2, 52429')
E('s_lshr_b32 s%d, s6, 18' % sTIDX)
E('s_mul_i32 s6, s%d, 5' % sTIDX)
E('s_sub_u32 s%d, s2, s6' % sKAP)
E('s_cmp_lt_u32 s2, 135')
E('s_cselect_b32 s%d, 1, 0' % sTEAM)
E('s_cbranch_scc1 L_role1')
E('s_sub_u32 s%d, s2, 135' % sTIDX)
E('s_cmp_lt_u32 s2, 243')
E('s_cselect_b32 s%d, 2, 0' % sTEAM)
L('L_role1')
E('s_mov_b32 s%d, 0' % sROLE)
E('s_sub_u32 s%d, s2, 136' % sIDX)
E('s_cmp_lt_u32 s2, 136')
E('s_cbranch_scc1 L_roledone')
E('s_cmp_lt_u32 s2, 216')
E('s_cselect_b32 s%d, 3, 0' % sROLE)
L('L_roledone')
E('s_mov_b32 s%d, 0x05040100' % sSELLO)
E('s_mov_b32 s%d, 0x07060302' % sSELHI)
E('s_mov_b32 s%d, 0x3db504f3' % sSCALE)
E('s_mov_b32 s%d, 0x3fb8aa3b' % sLOG2E)
E('s_mov_b32 s%d, 0' % sSPIN)
E('s_add_u32 s3, s%d, s%d' % (sH, sW))
E('s_lshl_b32 s3, s3, 10')
E('s_lshl_b32 s%d, s%d, 7' % (sWQO, sBH))
E('s_add_u32 s%d, s%d, %d' % (sWQO, sWQO, CNT_B))
E('v_and_b32 v19, 15, v0')
E('v_lshlrev_b32 v19, 5, v19')
E('v_lshrrev_b32 v20, 4, v0')
E('v_lshl_add_u32 v20, v20, 3, v19')
E('s_lshl_b32 s6, s%d, 9' % sW)
E('v_add_u32 v21, s6, v20')
E('s_waitcnt lgkmcnt(0)')
build_srd(S_X, 16, 2560)
build_srd(S_K, 18, 0x4000000)
build_srd(S_V, 20, 0x4000000)
build_srd(S_WQ, 22, 0 if 'q' in OPT.get('nodma', '') else 640 * 8192)
build_srd(S_WS, 38, WS_BYTES)
build_srd(S_DBG, 36, 256)
build_srd(S_OUT, 34, 2560)
stamp(0)

WQ0, K0 = 24, 64
q = []
def issue(name, text):
    q.append(name); E(text)
def wait_for(name):
    if name not in q: return
    i = q.index(name)
    E('s_waitcnt vmcnt(%d)' % (len(q) - 1 - i))
    del q[:i + 1]
def kv_load(which, t, reg):
    E('s_add_u32 s6, s3, %d' % (t * 1024))
    E('s_and_b32 s6, s6, 0x3fff')
    E('s_add_u32 s6, s6, s%d' % sKV)
    issue('%s%d' % (which, t), 'buffer_load_dwordx4 %s, v1, %s, s6 offen %s' % (vr(reg, 4), srd(S_K if which == 'K' else S_V), KFLAG if which == 'K' else VFLAG))
def Sreg(t): return K0 + 4 * t if t < 10 else K0 + 4 * (t - 10) + 1
def Vreg(t): return WQ0 + 4 * t if t < 10 else K0 + 4 * t

E('s_cmp_eq_u32 s%d, 0' % sW)
E('s_cbranch_scc0 L_normb')
C('service wave: nonce, resets, q partial over 80 wq rows (both b), q gather')
dbgstamp(4, True)
E('s_setprio 3')
E('v_mov_b32 v9, 0')
E('ds_write_b32 v9, v9 offset:%d' % L_FLAG)
E('s_memrealtime s[8:9]')
E('v_mul_u32_u24 v3, 20, v0')
E('buffer_load_dwordx4 v[4:7], v3, %s, 0 offen' % srd(S_X))
E('buffer_load_dword v8, v3, %s, 0 offen offset:16' % srd(S_X))
E('buffer_load_dwordx4 v[24:27], v3, %s, 0 offen offset:1280' % srd(S_X))
E('buffer_load_dword v28, v3, %s, 0 offen offset:1296' % srd(S_X))
E('v_lshrrev_b32 v9, 4, v0')
E('v_and_b32 v10, 15, v0')
E('s_mov_b32 s6, %d' % (20 * 8192))
E('v_mul_lo_u32 v2, v9, s6')
E('v_lshl_add_u32 v2, v10, 4, v2')
E('s_mul_i32 s7, s%d, %d' % (sR, 80 * 8192))
E('s_lshl_b32 s6, s%d, 8' % sH)
E('s_add_u32 s7, s7, s6')
for t in range(20):
    if t: E('s_add_u32 s7, s7, 8192')
    E('buffer_load_dwordx4 %s, v2, %s, s7 offen %s' % (vr(48 + 4 * t, 4), srd(S_WQ), WQFLAG))
E('s_waitcnt lgkmcnt(0)')
E('s_barrier')
E('s_lshl_b64 s[8:9], s[8:9], 16')
E('s_or_b32 s9, s9, 0x80000000')
E('v_mov_b32 v44, s8')
E('v_mov_b32 v45, s9')
E('v_mov_b32 v46, 0')
E('v_mov_b32 v47, 0')
for r in (12, 13, 14, 15): E('v_mov_b32 v%d, -1' % r)
E('s_lshl_b32 s12, s%d, 3' % sH)
E('s_mov_b64 exec, 1')
E('buffer_atomic_cmpswap_x2 v[44:47], off, %s, s12 sc0 sc1' % srd(S_DBG))
C('sentinel resets for every slot this WG will write (data v[12:15] = -1)')
E('s_lshl_b32 s6, s%d, 7' % sH)
E('s_lshl_b32 s7, s%d, 3' % sR)
E('s_add_u32 s6, s6, s7')
E('s_add_u32 s6, s6, %d' % ML_B)
E('buffer_store_dwordx2 v[12:13], v1, %s, s6 offen sc1' % srd(S_WS))
E('s_cmp_eq_u32 s%d, 0' % sQT)
E('s_cbranch_scc0 L_rs2')
E('v_mov_b32 v9, 0')
E('buffer_store_dword v9, off, %s, s%d sc1' % (srd(S_WS), sWQO))
L('L_rs2')
E('s_lshl_b32 s6, s%d, 12' % sH)
E('s_lshl_b32 s7, s%d, 9' % sR)
E('s_add_u32 s6, s6, s7')
E('s_add_u32 s6, s6, %d' % O_B)
E('s_mov_b32 exec_lo, -1')
E('buffer_store_dwordx4 v[12:15], v1, %s, s6 offen sc1' % srd(S_WS))
E('s_mov_b64 exec, -1')
E('s_cmp_lt_u32 s%d, 5' % sR)
E('s_cbranch_scc0 L_rs3')
E('v_lshrrev_b32 v9, 3, v0')
E('v_lshlrev_b32 v9, 12, v9')
E('v_and_b32 v10, 7, v0')
E('v_lshl_add_u32 v9, v10, 4, v9')
E('s_lshl_b32 s6, s%d, 15' % sR)
E('s_lshl_b32 s7, s%d, 7' % sH)
E('s_add_u32 s6, s6, s7')
E('s_add_u32 s6, s6, %d' % Y_B)
E('buffer_store_dwordx4 v[12:15], v9, %s, s6 offen sc1' % srd(S_WS))
L('L_rs3')
E('s_cmp_eq_u32 s%d, 1' % sTEAM)
E('s_cbranch_scc0 L_rs4')
E('v_lshrrev_b32 v9, 5, v0')
E('v_mul_u32_u24 v9, 2560, v9')
E('v_and_b32 v10, 31, v0')
E('v_lshl_add_u32 v9, v10, 4, v9')
E('s_mul_i32 s6, s%d, 10240' % sTIDX)
E('s_lshl_b32 s7, s%d, 9' % sKAP)
E('s_add_u32 s6, s6, s7')
E('s_add_u32 s6, s6, %d' % G_B)
E('s_add_u32 s7, s6, 5120')
E('buffer_store_dwordx4 v[12:15], v9, %s, s6 offen sc1' % srd(S_WS))
E('buffer_store_dwordx4 v[12:15], v9, %s, s7 offen sc1' % srd(S_WS))
L('L_rs4')
E('s_cmp_eq_u32 s%d, 2' % sTEAM)
E('s_cbranch_scc0 L_rsdone')
E('v_lshrrev_b32 v9, 2, v0')
E('v_mul_u32_u24 v9, %d, v9' % ZS)
E('v_and_b32 v10, 3, v0')
E('v_lshl_add_u32 v9, v10, 4, v9')
E('s_lshl_b32 s6, s%d, 6' % sTIDX)
E('s_add_u32 s6, s6, %d' % Z_B)
for i in range(5):
    if i: E('s_add_u32 s6, s6, %d' % (16 * ZS))
    E('buffer_store_dwordx4 v[12:15], v9, %s, s6 offen sc1' % srd(S_WS))
L('L_rsdone')
stamp(16)
E('s_waitcnt vmcnt(23)')
stamp(17)
layernorm(4, 9, 30)
layernorm(24, 9, 30)
E('v_lshrrev_b32 v9, 4, v0')
E('v_lshlrev_b32 v9, 3, v9')
E('s_lshl_b32 s6, s%d, 5' % sR)
E('v_add_u32 v9, s6, v9')
E('v_add_u32 v10, 4, v9')
LP = [list(range(30, 40)), [12, 13, 14, 15, 16, 17, 29, 19, 2, 3]]
for bb, X in ((0, 4), (1, 24)):
    for i in range(5):
        E('ds_bpermute_b32 v%d, v9, v%d' % (LP[bb][i], X + i))
        E('ds_bpermute_b32 v%d, v10, v%d' % (LP[bb][5 + i], X + i))
E('s_waitcnt lgkmcnt(0)')
stamp(18)
E('s_waitcnt vmcnt(3)')
ACC1 = [40, 41, 42, 43, 24, 25, 26, 27]
ACC0 = [4, 5, 6, 7, 8, 9, 10, 11]
TT = [18, 22, 23, 28]
for p in range(10):
    Wa, Wb = 48 + 8 * p, 52 + 8 * p
    for d in range(4):
        t0, t1 = TT[(2 * d) % 4], TT[(2 * d + 1) % 4]
        E('v_perm_b32 v%d, v%d, v%d, s%d' % (t0, Wb + d, Wa + d, sSELLO))
        E('v_perm_b32 v%d, v%d, v%d, s%d' % (t1, Wb + d, Wa + d, sSELHI))
        for bb, ACC in ((0, ACC0), (1, ACC1)):
            if p == 0:
                E('v_dot2_f32_bf16 v%d, v%d, v%d, 0' % (ACC[2 * d], t0, LP[bb][p]))
                E('v_dot2_f32_bf16 v%d, v%d, v%d, 0' % (ACC[2 * d + 1], t1, LP[bb][p]))
            else:
                E('v_dot2c_f32_bf16 v%d, v%d, v%d' % (ACC[2 * d], t0, LP[bb][p]))
                E('v_dot2c_f32_bf16 v%d, v%d, v%d' % (ACC[2 * d + 1], t1, LP[bb][p]))
E('s_nop 2')
for i in range(4): E('v_mov_b32 v%d, v%d' % (36 + i, 24 + i))
for i in range(4): E('v_mov_b32 v%d, v%d' % (32 + i, 40 + i))
acc8_rows_reduce(4)
acc8_rows_reduce(32)
E('s_waitcnt vmcnt(0)')
E('v_readfirstlane_b32 s10, v44')
E('v_readfirstlane_b32 s11, v45')
E('s_nop 3')
E('s_cmp_eq_u64 s[10:11], 0')
E('s_cselect_b32 s10, s8, s10')
E('s_cselect_b32 s11, s9, s11')
E('s_and_b32 s10, s10, 0xffff0000')
E('v_mov_b32 v6, s10')
E('v_mov_b32 v7, s11')
E('v_mov_b32 v34, s10')
E('v_mov_b32 v35, s11')
E('v_lshlrev_b32 v2, 1, v20')
E('s_lshl_b32 s9, s%d, 14' % sH)
E('s_lshl_b32 s8, s%d, 11' % sR)
E('s_add_u32 s8, s9, s8')
E('s_add_u32 s8, s8, %d' % QP_B)
E('buffer_store_dwordx4 v[4:7], v2, %s, s8 offen sc1' % srd(S_WS))
E('buffer_store_dwordx4 v[32:35], v2, %s, s8 offen offset:1024 sc1' % srd(S_WS))
E('v_mov_b32 v3, 1')
E('s_mov_b64 exec, 1')
E('buffer_atomic_add v3, off, %s, s12 sc1' % srd(S_DBG))
E('s_mov_b64 exec, -1')
stamp(19)
E('s_lshl_b32 s7, s%d, 10' % sBb)
E('s_add_u32 s9, s9, s7')
E('s_add_u32 s9, s9, %d' % QP_B)
L('L_qpoll')
E('s_mov_b32 s7, s9')
for i in range(8):
    E('buffer_load_dwordx4 %s, v1, %s, s7 offen offset:%d sc1' % (vr(24 + 4 * i, 4), srd(S_WS), (i & 1) * 2048))
    if i & 1: E('s_add_u32 s7, s7, 4096')
E('s_waitcnt vmcnt(0)')
E('v_xor_b32 v2, s10, v26')
E('v_xor_b32 v3, s11, v27')
for i in range(1, 8):
    E('v_xor_b32 v4, s10, v%d' % (26 + 4 * i))
    E('v_xor_b32 v5, s11, v%d' % (27 + 4 * i))
    E('v_or3_b32 v2, v2, v4, v5')
E('v_or_b32 v2, v2, v3')
E('v_cmp_ne_u32 vcc, 0, v2')
E('s_cbranch_vccz L_qgo')
spin_guard('L_qgo')
E('s_branch L_qpoll')
L('L_qgo')
stamp(20)
for i in (0, 2, 4, 6):
    for k in range(2): E('v_add_f32 v%d, v%d, v%d' % (24 + 4 * i + k, 24 + 4 * i + k, 28 + 4 * i + k))
for i in (0, 4):
    for k in range(2): E('v_add_f32 v%d, v%d, v%d' % (24 + 4 * i + k, 24 + 4 * i + k, 32 + 4 * i + k))
for k in range(2): E('v_add_f32 v%d, v%d, v%d' % (24 + k, 24 + k, 40 + k))
E('v_cvt_pk_bf16_f32 v24, v24, v25')
E('v_lshlrev_b32 v2, 2, v0')
E('ds_write_b32 v2, v24 offset:%d' % L_QBF)
E('v_mov_b32 v2, 0')
E('v_mov_b32 v3, 1')
E('s_waitcnt lgkmcnt(0)')
E('ds_write_b32 v2, v3 offset:%d' % L_FLAG)
E('s_setprio 1')
E('s_branch L_norm0')
L('L_normb')
E('s_setprio 1')
E('s_mov_b32 s15, s%d' % sW)
L('L_dma0')
C('tail weight DMA: 2 wo slots + 2 ffn slots per wave')
E('s_mov_b32 s%d, s24' % S_A)
E('s_mov_b32 s%d, s25' % (S_A + 1))
E('s_cmp_lt_u32 s%d, 5' % sR)
E('s_cselect_b32 s%d, %d, 0' % (S_A + 2, 0 if 'a' in OPT.get('nodma', '') else 4096 * 1280))
E('s_mov_b32 s%d, 0x20000' % (S_A + 3))
E('s_lshl_b32 s12, s%d, 7' % sH)
E('s_lshl_b32 s6, s15, 2')
E('s_add_u32 s12, s12, s6')
E('s_mul_i32 s12, s12, 1280')
E('s_lshl_b32 s7, s%d, 8' % sR)
E('s_add_u32 s12, s12, s7')
E('s_add_u32 s13, s12, %d' % (64 * 1280))
E('v_lshrrev_b32 v14, 4, v0')
E('v_mul_u32_u24 v14, 1280, v14')
E('v_and_b32 v15, 15, v0')
E('v_lshl_add_u32 v14, v15, 4, v14')
E('s_lshl_b32 s8, s15, 10')
build_srd(S_B, 28, 0)
build_srd(S_C, 30, 0)
E('s_mov_b32 s10, 0')
E('s_mov_b32 s11, 0')
E('v_mov_b32 v16, v1')
E('s_cmp_eq_u32 s%d, 1' % sTEAM)
E('s_cbranch_scc0 L_dma2')
E('s_mov_b32 s%d, %d' % (S_B + 2, 0 if 'b' in OPT.get('nodma', '') else 640 * 3456))
E('s_mov_b32 s%d, %d' % (S_C + 2, 0 if 'b' in OPT.get('nodma', '') else 640 * 3456))
E('v_lshrrev_b32 v16, 3, v0')
E('v_mul_u32_u24 v16, 3456, v16')
E('v_and_b32 v17, 7, v0')
E('v_lshl_add_u32 v16, v17, 4, v16')
E('s_lshl_b32 s6, s%d, 7' % sKAP)
E('s_lshl_b32 s7, s15, 3')
E('s_add_u32 s6, s6, s7')
E('s_mul_i32 s10, s6, 3456')
E('s_lshl_b32 s7, s%d, 7' % sTIDX)
E('s_add_u32 s10, s10, s7')
E('s_mov_b32 s11, s10')
E('s_branch L_dma3')
L('L_dma2')
E('s_cmp_eq_u32 s%d, 2' % sTEAM)
E('s_cbranch_scc0 L_dma3')
E('s_mov_b32 s%d, s32' % S_B)
E('s_mov_b32 s%d, s33' % (S_B + 1))
E('s_mov_b32 s%d, s32' % S_C)
E('s_mov_b32 s%d, s33' % (S_C + 1))
E('s_mul_i32 s10, s%d, 20480' % sTIDX)
if 'd' not in OPT.get('nodma', ''):
    E('s_add_u32 s%d, s10, 20480' % (S_B + 2))
    E('s_add_u32 s%d, s10, 20480' % (S_C + 2))
E('s_add_u32 s10, s10, s8')
E('s_add_u32 s11, s10, 16384')
L('L_dma3')
E('s_add_u32 s9, s8, %d' % L_WO)
E('s_mov_b32 m0, s9')
E('s_cmp_eq_u32 s15, 0')
E('s_cbranch_scc1 L_dma4')
E('s_barrier')
L('L_dma4')
E('s_cmp_lt_u32 s%d, 5' % sR)
E('s_cbranch_scc0 L_dma5')
E('s_add_u32 s9, s9, 16384')
E('buffer_load_dwordx4 v14, %s, s12 offen %s lds' % (srd(S_A), WFLAG))
E('s_mov_b32 m0, s9')
E('s_nop 0')
E('buffer_load_dwordx4 v14, %s, s13 offen %s lds' % (srd(S_A), WFLAG))
L('L_dma5')
E('s_cmp_eq_u32 s%d, 0' % sTEAM)
E('s_cbranch_scc1 L_dma6')
E('s_add_u32 s9, s8, %d' % L_F)
E('s_mov_b32 m0, s9')
E('s_add_u32 s9, s9, 16384')
E('buffer_load_dwordx4 v16, %s, s10 offen %s lds' % (srd(S_B), WFLAG))
E('s_mov_b32 m0, s9')
E('s_cmp_lt_u32 s11, s%d' % (S_C + 2))
E('s_cbranch_scc0 L_dma6')
E('buffer_load_dwordx4 v16, %s, s11 offen %s lds' % (srd(S_C), WFLAG))
L('L_dma6')
E('s_cmp_eq_u32 s15, 15')
E('s_mov_b32 s15, 0')
E('s_cbranch_scc1 L_dma0')
L('L_norm0')
for k in range(8): E('v_mov_b32 v%d, 0' % (10 + k))
E('v_mov_b32 v19, 0xff61b1e6')
E('v_mov_b32 v20, 0')
E('s_cmp_eq_u32 s%d, 0' % sW)
E('s_cbranch_scc1 L_claim0')
E('s_cmp_gt_u32 s%d, %d' % (sW, 16 - NWK))
E('s_cbranch_scc1 L_claim0')
E('s_cmp_gt_u32 s%d, %d' % (sW, NS))
E('s_cbranch_scc1 L_idle')

def qwait(tag):
    E('v_mov_b32 v6, 0')
    L('L_qwait%s' % tag)
    E('ds_read_b32 v2, v6 offset:%d' % L_FLAG)
    E('s_waitcnt lgkmcnt(0)')
    E('v_readfirstlane_b32 s6, v2')
    E('s_cmp_eq_u32 s6, 1')
    E('s_cbranch_scc1 L_qok%s' % tag)
    spin_guard('L_qok%s' % tag)
    E('s_sleep 2')
    E('s_branch L_qwait%s' % tag)
    L('L_qok%s' % tag)

def claim():
    E('s_setprio 0')
    E('v_mov_b32 v23, 1')
    E('s_mov_b64 exec, 1')
    issue('CLAIM', 'buffer_atomic_add v23, off, %s, s%d sc0 sc1' % (srd(S_WS), sWQO))
    E('s_mov_b64 exec, -1')

def k_batch(bt):
    ts = list(range(4 * bt, 4 * bt + 4))
    wait_for('K%d' % ts[-1])
    for t in ts: E('v_dot2_f32_bf16 v%d, v%d, v2, 0' % (Sreg(t), K0 + 4 * t))
    for d in range(1, 4):
        for t in ts: E('v_dot2c_f32_bf16 v%d, v%d, v%d' % (Sreg(t), K0 + 4 * t + d, 2 + d))
    for step in BFLY:
        for t in ts: E('v_add_f32_dpp v%d, v%d, v%d %s%s' % (Sreg(t), Sreg(t), Sreg(t), step, DPP))
    for t in (ts[0], ts[2]):
        a, b = Sreg(t), Sreg(t + 1)
        E('v_cvt_pk_bf16_f32 v6, v%d, v%d' % (a, b))
        unpack(a, b, 6)
        E('v_mul_f32 v%d, s%d, v%d' % (a, sSCALE, a))
        E('v_mul_f32 v%d, s%d, v%d' % (b, sSCALE, b))
        E('v_cvt_pk_bf16_f32 v6, v%d, v%d' % (a, b))
        unpack(a, b, 6)

def softmax_merge(n):
    C('softmax merge')
    E('v_max3_f32 v6, v%d, v%d, v%d' % (Sreg(0), Sreg(1), Sreg(2)))
    for t in range(3, n - 1, 2): E('v_max3_f32 v6, v6, v%d, v%d' % (Sreg(t), Sreg(t + 1)))
    E('v_max3_f32 v6, v6, v%d, v19' % Sreg(n - 1))
    rows_allreduce(6, 7, 'max')
    E('v_sub_f32 v8, v19, v6')
    E('v_mul_f32 v8, s%d, v8' % sLOG2E)
    E('v_exp_f32 v8, v8')
    E('v_mul_f32 v7, s%d, v6' % sLOG2E)
    E('v_mov_b32 v19, v6')
    for t in range(n): E('v_fma_f32 v%d, v%d, s%d, -v7' % (Sreg(t), Sreg(t), sLOG2E))
    for t in range(n): E('v_exp_f32 v%d, v%d' % (Sreg(t), Sreg(t)))
    for k in range(8): E('v_mul_f32 v%d, v%d, v8' % (10 + k, 10 + k))
    E('v_fma_f32 v20, v20, v8, v%d' % Sreg(0))
    E('v_add_f32 v9, v%d, v%d' % (Sreg(1), Sreg(2)))
    for t in range(3, n - 1, 2):
        E('v_add_f32 v20, v20, v%d' % Sreg(t))
        E('v_add_f32 v9, v9, v%d' % Sreg(t + 1))
    E('v_add_f32 v20, v20, v%d' % Sreg(n - 1))
    E('v_add_f32 v20, v20, v9')
    for i in range(n // 2): E('v_cvt_pk_bf16_f32 v%d, v%d, v%d' % (2 + i, Sreg(2 * i), Sreg(2 * i + 1)))
def load_q():
    E('v_and_b32 v6, 15, v0')
    E('v_lshlrev_b32 v6, 4, v6')
    E('ds_read_b128 v[2:5], v6 offset:%d' % L_QBF)
    E('s_waitcnt lgkmcnt(0)')

L('L_chunk')
for t in range(16): kv_load('K', t, K0 + 4 * t)
for t in range(10): kv_load('V', t, Vreg(t))
if not int(OPT.get('noq', 0)): qwait('a')
load_q()
stamp(1)
k_batch(0); k_batch(1); k_batch(2)
kv_load('V', 10, Vreg(10)); kv_load('V', 11, Vreg(11))
k_batch(3)
for t in range(12, 16): kv_load('V', t, Vreg(t))
stamp(2)
softmax_merge(16)
stamp(3)
for p in range(8):
    wait_for('V%d' % (2 * p + 1))
    pair_gemv(Vreg(2 * p), Vreg(2 * p + 1), 2 + p, 10, 64)
E('s_branch L_done')
L('L_claim0')
qwait('b')
E('s_cmp_eq_u32 s%d, 0' % sW)
E('s_cbranch_scc0 L_ccd')
C('wave 15: all WGs have finished their resets?')
E('v_and_b32 v6, 31, v0')
E('v_lshlrev_b32 v6, 3, v6')
L('L_cc')
E('buffer_load_dword v23, v6, %s, 0 offen sc1' % srd(S_DBG))
E('s_waitcnt vmcnt(0)')
E('v_and_b32 v23, 0xffff, v23')
E('v_cmp_gt_u32 vcc, 8, v23')
E('s_cbranch_vccz L_ccd')
spin_guard('L_ccd')
E('s_sleep 16')
E('s_branch L_cc')
L('L_ccd')
q[:] = []
claim()
E('s_branch L_next')
L('L_small')
def kv_small(which, t, reg):
    E('s_add_u32 s6, s3, %d' % (t * 1024))
    E('s_and_b32 s6, s6, 0x1fff')
    E('s_add_u32 s6, s6, s%d' % sKV)
    issue('%s%d' % (which, t), 'buffer_load_dwordx4 %s, v1, %s, s6 offen %s' % (vr(reg, 4), srd(S_K if which == 'K' else S_V), KFLAG if which == 'K' else VFLAG))
q[:] = []
for t in range(8): kv_small('K', t, K0 + 4 * t)
for t in range(8): kv_small('V', t, Vreg(t))
if PREF: claim()
load_q()
k_batch(0); k_batch(1)
softmax_merge(8)
for p in range(4):
    wait_for('V%d' % (2 * p + 1))
    pair_gemv(Vreg(2 * p), Vreg(2 * p + 1), 2 + p, 10, 64)
if not PREF: claim()
L('L_next')
wait_for('CLAIM')
E('v_readfirstlane_b32 s6, v23')
E('s_nop 1')
E('s_cmp_lt_u32 s6, %d' % (2 * POOL))
E('s_cbranch_scc0 L_done')
E('s_add_u32 s6, s6, %d' % (8 * NS))
E('s_lshl_b32 s6, s6, 13')
E('s_lshl_b32 s%d, s%d, 20' % (sKV, sBH))
E('s_add_u32 s%d, s%d, s6' % (sKV, sKV))
E('s_branch L_small')
L('L_idle')
E('s_waitcnt vmcnt(0)')
L('L_done')
E('s_setprio 1')
rows_allreduce(20, 6, 'add')
E('s_lshl_b32 s6, s%d, 3' % sW)
E('v_mov_b32 v6, s6')
E('v_mov_b32 v8, v19')
E('v_mov_b32 v9, v20')
E('s_mov_b64 exec, 1')
E('ds_write_b64 v6, v[8:9] offset:%d' % L_ML)
E('s_mov_b64 exec, -1')
acc8_rows_reduce(10)
E('ds_write_b64 v21, v[10:11] offset:%d' % L_QP)
E('s_waitcnt lgkmcnt(0)')
E('s_barrier')
stamp(4)
E('s_cmp_eq_u32 s%d, 0' % sW)
E('s_cbranch_scc0 L_t1')
C('wave 0: publish O partial')
E('v_and_b32 v14, 15, v0')
E('v_lshlrev_b32 v14, 3, v14')
E('ds_read_b64 v[16:17], v14 offset:%d' % L_ML)
E('v_and_b32 v2, 31, v0')
E('v_lshlrev_b32 v2, 4, v2')
E('v_lshrrev_b32 v3, 5, v0')
E('v_lshl_add_u32 v4, v3, 12, v2')
for i in range(8): E('ds_read_b128 %s, v4 offset:%d' % (vr(24 + 4 * i, 4), L_QP + i * 512))
E('s_waitcnt lgkmcnt(8)')
E('v_mov_b32 v19, v16')
row_allreduce(19, 'max')
E('v_sub_f32 v16, v16, v19')
E('v_mul_f32 v16, s%d, v16' % sLOG2E)
E('v_exp_f32 v16, v16')
E('s_nop 0')
E('v_mul_f32 v20, v16, v17')
row_allreduce(20, 'add')
E('v_mov_b32 v17, v16')
E('s_nop 1')
E('v_mov_b32_dpp v17, v16 row_ror:8 row_mask:0xc bank_mask:0xf')
E('s_nop 1')
for i in range(8): E('v_mov_b32_dpp v%d, v17 row_newbcast:%d%s' % (56 + i, i, DPP))
E('s_waitcnt lgkmcnt(0)')
for k in range(4): E('v_mul_f32 v%d, v%d, v56' % (24 + k, 24 + k))
for i in range(1, 8):
    for k in range(4): E('v_fmac_f32 v%d, v%d, v%d' % (24 + k, 24 + 4 * i + k, 56 + i))
half_combine(24)
E('v_lshl_add_u32 v2, v3, 3, v2')
E('s_lshl_b32 s6, s%d, 12' % sH)
E('s_lshl_b32 s7, s%d, 9' % sR)
E('s_add_u32 s6, s6, s7')
E('s_add_u32 s6, s6, %d' % O_B)
E('buffer_store_dwordx2 v[24:25], v2, %s, s6 offen sc1' % srd(S_WS))
E('v_mov_b32 v16, v19')
E('v_mov_b32 v17, v20')
E('s_lshl_b32 s6, s%d, 7' % sH)
E('s_lshl_b32 s7, s%d, 3' % sR)
E('s_add_u32 s6, s6, s7')
E('s_add_u32 s6, s6, %d' % ML_B)
E('s_mov_b64 exec, 1')
E('buffer_store_dwordx2 v[16:17], v1, %s, s6 offen sc1' % srd(S_WS))
stamp(5)
if int(OPT.get('b4x', 1)): E('s_barrier')
E('s_endpgm')


SLP = int(OPT.get('slp', 0))
DRY = int(OPT.get('dry', 1))
def masked_poll(tag, loads, tmp, thr=None, slp=0):
    regs = []
    for (d, n, va, sr, so, im) in loads: regs += list(range(d, d + n))
    L('L_%spoll' % tag)
    for i, (d, n, va, sr, so, im) in enumerate(loads):
        op = {1: 'dword', 2: 'dwordx2', 4: 'dwordx4'}[n]
        E('buffer_load_%s %s, v%d, %s, s%d offen offset:%d sc1' % (op, vr(d, n) if n > 1 else 'v%d' % d, va, srd(sr), so, im))
    nl = len(loads)
    first = [True, True]
    for i, (d, n, va, sr, so, im) in enumerate(loads):
        E('s_waitcnt vmcnt(%d)' % (nl - 1 - i))
        t = tmp + (i & 1)
        assert n == 4
        if first[i & 1]:
            E('v_max3_u32 v%d, v%d, v%d, v%d' % (t, d, d + 1, d + 2))
            E('v_max_u32 v%d, v%d, v%d' % (t, t, d + 3))
            first[i & 1] = False
        else:
            E('v_max3_u32 v%d, v%d, v%d, v%d' % (t, t, d, d + 1))
            E('v_max3_u32 v%d, v%d, v%d, v%d' % (t, t, d + 2, d + 3))
    E('v_max_u32 v%d, v%d, v%d' % (tmp, tmp, tmp + 1))
    E('v_cmp_eq_u32 vcc, -1, v%d' % tmp)
    E('s_cbranch_vccz L_%sgo' % tag)
    E('s_mov_b64 exec, vcc')
    spin_guard('L_%sgo' % tag)
    if thr is not None:
        E('s_bcnt1_i32_b64 s4, vcc')
        E('s_cmp_le_u32 s4, %d' % thr)
        E('s_cbranch_scc1 L_%spoll' % tag)
        E('s_sleep %d' % slp)
    E('s_branch L_%spoll' % tag)
    L('L_%sgo' % tag)
    E('s_mov_b64 exec, -1')

L('L_t1')
if TS == 2:
    E('s_cmp_eq_u32 s%d, 5' % sW)
    E('s_cbranch_scc0 L_t2x')
    stamp(26)
    L('L_t2x')
if int(OPT.get('b4x', 1)): E('s_barrier')
E('s_cmp_eq_u32 s%d, 7' % sW)
E('s_cbranch_scc0 L_t1b')
C('wave 7: gather O partials of this head, combine, bf16 -> LDS')
E('v_lshrrev_b32 v4, 5, v0')
E('v_and_b32 v5, 31, v0')
E('v_lshlrev_b32 v6, 11, v4')
E('v_lshl_add_u32 v6, v5, 4, v6')
E('v_lshlrev_b32 v7, 5, v4')
E('s_lshl_b32 s8, s%d, 12' % sH)
E('s_add_u32 s8, s8, %d' % O_B)
E('s_lshl_b32 s9, s%d, 7' % sH)
E('s_add_u32 s9, s9, %d' % ML_B)
E('v_lshlrev_b32 v12, 8, v4')
E('v_lshl_add_u32 v12, v5, 3, v12')
masked_poll('y', [(48 + 4 * i, 4, 6, S_WS, 8, i * 512) for i in range(4)] + [(64, 4, 7, S_WS, 9, 0), (68, 4, 7, S_WS, 9, 16)], 22)
stamp(6)
E('v_max3_f32 v8, v64, v66, v68')
E('v_max_f32 v8, v8, v70')
for i in range(4):
    E('v_sub_f32 v%d, v%d, v8' % (64 + 2 * i, 64 + 2 * i))
    E('v_mul_f32 v%d, s%d, v%d' % (64 + 2 * i, sLOG2E, 64 + 2 * i))
    E('v_exp_f32 v%d, v%d' % (64 + 2 * i, 64 + 2 * i))
E('s_nop 0')
E('v_mul_f32 v9, v64, v65')
for i in range(1, 4): E('v_fmac_f32 v9, v%d, v%d' % (64 + 2 * i, 65 + 2 * i))
E('v_rcp_f32 v9, v9')
for k in range(4): E('v_mul_f32 v%d, v64, v%d' % (48 + k, 48 + k))
for i in range(1, 4):
    for k in range(4): E('v_fmac_f32 v%d, v%d, v%d' % (48 + k, 64 + 2 * i, 48 + 4 * i + k))
for k in range(4): E('v_mul_f32 v%d, v9, v%d' % (48 + k, 48 + k))
E('v_cvt_pk_bf16_f32 v10, v48, v49')
E('v_cvt_pk_bf16_f32 v11, v50, v51')
E('ds_write_b64 v12, v[10:11] offset:%d' % L_OBF)
E('s_waitcnt lgkmcnt(0)')
E('s_barrier')
E('s_endpgm')

L('L_t1b')
E('s_cmp_lt_u32 s%d, 5' % sW)
E('s_cbranch_scc0 L_t2')
E('s_cmp_lt_u32 s%d, 5' % sR)
E('s_cbranch_scc0 L_end')
C('waves 1..4: two y tiles each')
E('s_sub_u32 s15, s%d, 1' % sW)
E('v_lshrrev_b32 v2, 4, v0')
E('v_bfe_u32 v3, v0, 2, 2')
E('v_lshl_add_u32 v3, v2, 3, v3')
E('v_lshlrev_b32 v3, 8, v3')
E('v_and_b32 v4, 3, v0')
E('v_lshl_add_u32 v3, v4, 3, v3')
E('s_lshl_b32 s6, s15, 6')
E('v_add_u32 v3, s6, v3')
for tl in range(2):
    for s in range(4):
        for hf in range(2):
            E('ds_read_b64_tr_b16 %s, v3 offset:%d' % (vr(32 + 16 * tl + 4 * s + 2 * hf, 2), L_WO + s * 8192 + hf * 1024 + tl * 32))
E('v_and_b32 v13, 1, v0')
E('v_lshlrev_b32 v13, 8, v13')
E('v_lshl_add_u32 v13, v2, 4, v13')
E('s_lshl_b32 s6, s%d, 15' % sR)
E('s_lshl_b32 s7, s15, 13')
E('s_add_u32 s6, s6, s7')
E('s_lshl_b32 s7, s%d, 7' % sH)
E('s_add_u32 s6, s6, s7')
E('s_add_u32 s6, s6, %d' % Y_B)
E('s_add_u32 s7, s6, 4096')
E('v_and_b32 v14, 15, v0')
E('v_lshlrev_b32 v14, 6, v14')
E('v_lshl_add_u32 v14, v2, 4, v14')
E('s_waitcnt lgkmcnt(0)')
E('s_barrier')
for s in range(4): E('ds_read_b128 %s, v13 offset:%d' % (vr(72 + 4 * s, 4), L_OBF + 64 * s))
for s in range(4):
    E('s_waitcnt lgkmcnt(%d)' % (3 - s))
    E('v_mfma_f32_16x16x32_bf16 v[88:91], %s, %s, %s' % (vr(32 + 4 * s, 4), vr(72 + 4 * s, 4), '0' if s == 0 else 'v[88:91]'))
    E('v_mfma_f32_16x16x32_bf16 v[92:95], %s, %s, %s' % (vr(48 + 4 * s, 4), vr(72 + 4 * s, 4), '0' if s == 0 else 'v[92:95]'))
E('s_nop 4')
E('s_mov_b32 exec_lo, 0x30003')
E('s_mov_b32 exec_hi, 0x30003')
E('buffer_store_dwordx4 v[88:91], v14, %s, s6 offen sc1' % srd(S_WS))
E('buffer_store_dwordx4 v[92:95], v14, %s, s7 offen sc1' % srd(S_WS))
stamp(7)
E('s_endpgm')

def two_val_xor16(a, b, t0, t1):
    E('v_mov_b32 v%d, v%d' % (t0, a))
    E('v_mov_b32 v%d, v%d' % (t1, b))
    E('s_nop 1')
    E('v_permlane16_swap_b32 v%d, v%d' % (a, t0))
    E('v_permlane16_swap_b32 v%d, v%d' % (b, t1))
    E('v_add_f32 v%d, v%d, v%d' % (a, a, t0))
    E('v_add_f32 v%d, v%d, v%d' % (b, b, t1))

def res_add_pack(R, X):
    E('v_cvt_pk_bf16_f32 v%d, v%d, v%d' % (R + 2, R, R + 1))
    unpack(R, R + 1, R + 2)
    unpack(5, 6, X)
    E('v_add_f32 v%d, v%d, v5' % (R, R))
    E('v_add_f32 v%d, v%d, v6' % (R + 1, R + 1))
    E('v_cvt_pk_bf16_f32 v%d, v%d, v%d' % (R + 2, R, R + 1))

def h_slice_setup(sSIG):
    E('v_bfe_u32 v10, v0, 2, 1')
    E('v_mul_u32_u24 v10, 1280, v10')
    E('v_and_b32 v11, 3, v0')
    E('v_lshl_add_u32 v10, v11, 3, v10')
    E('v_lshrrev_b32 v11, 5, v0')
    E('v_lshl_add_u32 v10, v11, 2, v10')
    E('s_lshl_b32 s8, s%d, 5' % sSIG)
    E('buffer_load_dword v4, v10, %s, s8 offen' % srd(S_X))
    E('s_lshl_b32 s9, s%d, 12' % sSIG)
    E('s_add_u32 s9, s9, %d' % Y_B)

def h_slice(tag, R):
    masked_poll(tag, [(R + 4 * i, 4, 1, S_WS, 9, i * 1024) for i in range(4)], 22, int(OPT.get('ythr', 40)), int(OPT.get('yslp', 16)))
    stamp(8)
    for k in range(4):
        E('v_add_f32 v%d, v%d, v%d' % (R + k, R + k, R + 4 + k))
        E('v_add_f32 v%d, v%d, v%d' % (R + 8 + k, R + 8 + k, R + 12 + k))
    for k in range(4): E('v_add_f32 v%d, v%d, v%d' % (R + k, R + k, R + 8 + k))
    E('s_nop 0')
    for k in range(4): E('v_add_f32_dpp v%d, v%d, v%d row_ror:8%s' % (R + k, R + k, R + k, DPP))
    half_combine(R)
    two_val_xor16(R, R + 1, R + 2, R + 3)
    res_add_pack(R, 4)

L('L_t2')
E('s_cmp_eq_u32 s%d, 6' % sW)
E('s_cbranch_scc0 L_t3')
E('s_cmp_eq_u32 s%d, 1' % sTEAM)
E('s_cbranch_scc1 L_stats')
E('s_cmp_eq_u32 s%d, 3' % sROLE)
E('s_cbranch_scc0 L_end')
C('wave 6: final reducer')
E('s_cmp_ge_u32 s%d, 40' % sIDX)
E('s_cselect_b32 s12, 1, 0')
E('s_mul_i32 s7, s12, 40')
E('s_sub_u32 s13, s%d, s7' % sIDX)
h_slice_setup(13)
E('s_barrier')
E('s_barrier')
h_slice('e', 64)
E('v_and_b32 v3, 35, v0')
E('s_lshl_b32 s6, s12, 2')
E('v_add_u32 v3, s6, v3')
E('v_lshlrev_b32 v3, 2, v3')
E('ds_bpermute_b32 v4, v3, v66')
E('s_mul_i32 s8, s12, 1280')
E('s_lshl_b32 s7, s13, 5')
E('s_add_u32 s8, s8, s7')
E('v_and_b32 v3, 3, v0')
E('v_lshlrev_b32 v2, 3, v3')
E('v_lshrrev_b32 v3, 5, v0')
E('v_lshl_add_u32 v2, v3, 2, v2')
E('s_mul_i32 s9, s%d, %d' % (sIDX, ZS))
E('s_add_u32 s9, s9, %d' % Z_B)
E('s_add_u32 s10, s9, 4096')
E('s_mov_b32 s%d, s38' % S_A)
E('s_mov_b32 s%d, s39' % (S_A + 1))
E('s_add_u32 s%d, s9, %d' % (S_A + 2, ZS))
E('s_mov_b32 s%d, 0x20000' % (S_A + 3))
E('s_waitcnt lgkmcnt(0)')
E('s_barrier')
E('s_barrier')
if int(OPT.get('fslp', 0)): E('s_sleep %d' % int(OPT.get('fslp', 0)))
masked_poll('f', [(32 + 4 * i, 4, 1, S_A, 9 if i < 4 else 10, (i & 3) * 1024) for i in range(7)], 22)
stamp(14)
for k in range(4):
    E('v_add_f32 v%d, v%d, v%d' % (32 + k, 32 + k, 36 + k))
    E('v_add_f32 v%d, v%d, v%d' % (40 + k, 40 + k, 44 + k))
    E('v_add_f32 v%d, v%d, v%d' % (48 + k, 48 + k, 52 + k))
for k in range(4):
    E('v_add_f32 v%d, v%d, v%d' % (32 + k, 32 + k, 40 + k))
    E('v_add_f32 v%d, v%d, v%d' % (48 + k, 48 + k, 56 + k))
for k in range(4): E('v_add_f32 v%d, v%d, v%d' % (32 + k, 32 + k, 48 + k))
E('s_nop 0')
for k in range(4): E('v_add_f32_dpp v%d, v%d, v%d row_ror:4%s' % (32 + k, 32 + k, 32 + k, DPP))
for k in range(4): E('v_add_f32_dpp v%d, v%d, v%d row_ror:8%s' % (32 + k, 32 + k, 32 + k, DPP))
half_combine(32)
two_val_xor16(32, 33, 34, 35)
res_add_pack(32, 4)
E('s_mov_b32 exec_lo, 0xf')
E('s_mov_b32 exec_hi, 0xf')
E('buffer_store_dword v34, v2, %s, s8 offen' % srd(S_OUT))
stamp(15)
E('s_endpgm')

L('L_t3')
E('s_cmp_lt_u32 s%d, 8' % sW)
E('s_cbranch_scc1 L_end')
E('s_sub_u32 s15, s%d, 8' % sW)
E('v_lshrrev_b32 v2, 4, v0')
E('v_bfe_u32 v3, v0, 2, 2')
E('v_and_b32 v7, 3, v0')
E('s_cmp_eq_u32 s%d, 1' % sTEAM)
E('s_cbranch_scc0 L_t4')
C('F1 team: h slice -> raw partial gate/up products, column sums, stats')
E('s_and_b32 s13, s15, 1')
E('s_lshr_b32 s14, s15, 1')
E('v_lshl_add_u32 v5, v2, 3, v3')
E('v_lshlrev_b32 v5, 7, v5')
E('v_lshl_add_u32 v5, v7, 3, v5')
E('s_lshl_b32 s6, s13, 14')
E('s_lshl_b32 s7, s14, 5')
E('s_add_u32 s6, s6, s7')
E('v_add_u32 v5, s6, v5')
for s in range(4):
    for hf in range(2):
        E('ds_read_b64_tr_b16 %s, v5 offset:%d' % (vr(32 + 4 * s + 2 * hf, 2), L_F + s * 4096 + hf * 512))
E('v_mov_b32 v12, 0x3f803f80')
E('v_lshlrev_b32 v13, 2, v0')
E('ds_write_b32 v13, v12 offset:%d' % (L_L2 + 512))
E('v_and_b32 v12, 15, v0')
E('v_min_u32 v12, 2, v12')
E('v_lshlrev_b32 v12, 8, v12')
E('v_lshl_add_u32 v15, v2, 4, v12')
E('s_lshl_b32 s8, s%d, 2' % sTIDX)
E('s_add_u32 s12, s14, s8')
E('s_mul_i32 s12, s12, 2560')
E('s_lshl_b32 s7, s%d, 9' % sKAP)
E('s_add_u32 s12, s12, s7')
E('s_mul_i32 s8, s13, 192')
E('s_add_u32 s12, s12, s8')
E('s_add_u32 s12, s12, %d' % G_B)
E('v_and_b32 v14, 15, v0')
E('v_lshlrev_b32 v14, 6, v14')
E('v_lshl_add_u32 v14, v2, 4, v14')
E('s_lshl_b32 s10, s%d, 3' % sKAP)
E('s_add_u32 s10, s10, s15')
h_slice_setup(10)
E('v_bfe_u32 v16, v0, 2, 1')
E('v_lshlrev_b32 v16, 8, v16')
E('v_lshl_add_u32 v16, v7, 3, v16')
E('v_lshl_add_u32 v16, v11, 2, v16')
E('s_lshl_b32 s6, s15, 5')
E('v_add_u32 v16, s6, v16')
E('s_barrier')
E('s_barrier')
if int(OPT.get('nslp', 0)): E('s_sleep %d' % int(OPT.get('nslp', 0)))
h_slice('n', 64)
E('ds_write_b32 v16, v66 offset:%d' % L_L2)
E('s_waitcnt lgkmcnt(0)')
E('s_barrier')
stamp(11)
for s in range(4): E('ds_read_b128 %s, v15 offset:%d' % (vr(64 + 4 * s, 4), L_L2 + 64 * s))
for s in range(4):
    E('s_waitcnt lgkmcnt(%d)' % (3 - s))
    E('v_mfma_f32_16x16x32_bf16 v[88:91], %s, %s, %s' % (vr(32 + 4 * s, 4), vr(64 + 4 * s, 4), '0' if s == 0 else 'v[88:91]'))
E('s_nop 5')
E('s_mov_b32 exec_lo, 0x70007')
E('s_mov_b32 exec_hi, 0x70007')
E('buffer_store_dwordx4 v[88:91], v14, %s, s12 offen sc1' % srd(S_WS))
stamp(23)
E('s_endpgm')
L('L_stats')
C('wave 6 of F1 WGs: stats of the 128-slice')
E('s_mul_i32 s11, s%d, 10240' % sTIDX)
E('s_lshl_b32 s7, s%d, 9' % sKAP)
E('s_add_u32 s11, s11, s7')
E('s_add_u32 s11, s11, %d' % (G_B + 384))
E('v_and_b32 v7, 3, v0')
E('v_lshrrev_b32 v11, 5, v0')
E('v_mul_u32_u24 v16, 2560, v7')
E('v_lshl_add_u32 v16, v11, 4, v16')
E('v_lshlrev_b32 v17, 3, v0')
E('v_mov_b32 v106, 0')
E('v_mov_b32 v107, 0')
E('s_barrier')
E('s_barrier')
E('s_barrier')
E('ds_read_b64 v[96:97], v17 offset:%d' % L_L2)
E('s_waitcnt lgkmcnt(0)')
unpack(100, 101, 96)
unpack(102, 103, 97)
E('v_add_f32 v104, v100, v101')
E('v_add_f32 v105, v102, v103')
E('v_add_f32 v104, v104, v105')
def half_allreduce(v, t):
    row_allreduce(v, 'add')
    E('v_mov_b32 v%d, v%d' % (t, v))
    E('s_nop 1')
    E('v_permlane16_swap_b32 v%d, v%d' % (v, t))
    E('v_add_f32 v%d, v%d, v%d' % (v, v, t))
half_allreduce(104, 105)
E('v_mul_f32 v104, 0x3c000000, v104')
for k in range(4): E('v_sub_f32 v%d, v%d, v104' % (100 + k, 100 + k))
E('v_mul_f32 v105, v100, v100')
E('v_mul_f32 v98, v102, v102')
E('v_fmac_f32 v105, v101, v101')
E('v_fmac_f32 v98, v103, v103')
E('v_add_f32 v105, v105, v98')
half_allreduce(105, 98)
E('s_mov_b32 exec_lo, 0xf')
E('s_mov_b32 exec_hi, 0xf')
E('buffer_store_dwordx4 v[104:107], v16, %s, s11 offen sc1' % srd(S_WS))
stamp(25)
E('s_endpgm')

L('L_t4')
E('s_cmp_eq_u32 s%d, 2' % sTEAM)
E('s_cbranch_scc0 L_end')
C('F2 team: LN fixup, hm, down partial')
E('v_lshl_add_u32 v6, v2, 2, v3')
E('v_mul_u32_u24 v6, 1280, v6')
E('v_lshl_add_u32 v6, v7, 3, v6')
E('s_mul_i32 s6, s15, 160')
E('v_add_u32 v6, s6, v6')
for t in range(5): E('ds_read_b64_tr_b16 %s, v6 offset:%d' % (vr(52 + 2 * t, 2), L_F + t * 32))
E('s_mul_i32 s9, s%d, 2560' % sTIDX)
E('s_add_u32 s9, s9, %d' % G_B)
E('s_mul_i32 s6, s15, %d' % (5 * ZS))
E('s_lshl_b32 s7, s%d, 6' % sTIDX)
E('s_add_u32 s12, s6, s7')
E('s_add_u32 s12, s12, %d' % Z_B)
E('v_and_b32 v14, 1, v0')
E('v_mul_u32_u24 v14, %d, v14' % (40 * ZS))
E('v_lshl_add_u32 v14, v2, 4, v14')
E('v_min_u32 v9, 25, v0')
E('v_lshlrev_b32 v9, 4, v9')
E('v_and_b32 v16, 1, v0')
E('v_lshlrev_b32 v17, 6, v16')
E('v_lshl_add_u32 v17, v2, 4, v17')
E('v_lshlrev_b32 v19, 4, v2')
E('v_lshlrev_b32 v20, 4, v16')
E('v_mov_b32 v90, 0x43000000')
E('s_barrier')
E('s_barrier')
E('s_cmp_eq_u32 s15, 0')
E('s_cbranch_scc0 L_gb')
masked_poll('g', [(64 + 4 * i, 4, 9, S_WS, 9, i * 512) for i in range(5)], 22)
stamp(24)
for k in range(4):
    E('v_add_f32 v%d, v%d, v%d' % (84 + k, 64 + k, 68 + k))
    E('v_add_f32 v%d, v%d, v%d' % (96 + k, 72 + k, 76 + k))
for k in range(4): E('v_add_f32 v%d, v%d, v%d' % (84 + k, 84 + k, 80 + k))
for k in range(4): E('v_add_f32 v%d, v%d, v%d' % (84 + k, 84 + k, 96 + k))
E('ds_write_b128 v9, v[84:87] offset:%d' % L_P)
E('v_mul_f32 v92, 0x3e4ccccd, v84')
for i in range(5): E('v_sub_f32 v%d, v%d, v92' % (96 + i, 64 + 4 * i))
E('v_mul_f32 v88, v96, v96')
E('v_mul_f32 v89, v97, v97')
E('v_fmac_f32 v88, v98, v98')
E('v_fmac_f32 v89, v99, v99')
E('v_fmac_f32 v88, v100, v100')
E('v_add_f32 v88, v88, v89')
E('v_fma_f32 v93, v88, v90, v85')
E('v_mul_f32 v93, 0x3acccccd, v93')
E('v_cvt_pk_bf16_f32 v94, v92, v93')
unpack(92, 93, 94)
E('v_add_f32 v93, 0x3727c5ac, v93')
rne_bf16(93)
E('v_sqrt_f32 v93, v93')
E('s_nop 0')
rne_bf16(93)
E('v_rcp_f32 v93, v93')
E('s_mov_b32 exec_lo, 0x3000000')
E('s_mov_b32 exec_hi, 0')
E('ds_write_b64 v9, v[92:93] offset:%d' % (L_P + 128))
E('s_mov_b64 exec, -1')
L('L_gb')
E('s_waitcnt lgkmcnt(0)')
E('s_barrier')
E('ds_read_b128 v[64:67], v17 offset:%d' % L_P)
E('ds_read_b128 v[68:71], v19 offset:%d' % (L_P + 128))
E('ds_read_b128 v[72:75], v17 offset:%d' % (L_P + 192))
E('ds_read_b128 v[76:79], v19 offset:%d' % (L_P + 320))
E('ds_read_b64 v[80:81], v20 offset:%d' % (L_P + 512))
E('s_waitcnt lgkmcnt(0)')
for k in range(4):
    E('v_fma_f32 v%d, -v80, v%d, v%d' % (64 + k, 68 + k, 64 + k))
    E('v_fma_f32 v%d, -v80, v%d, v%d' % (72 + k, 76 + k, 72 + k))
for k in range(4):
    E('v_mul_f32 v%d, v%d, v81' % (64 + k, 64 + k))
    E('v_mul_f32 v%d, v%d, v81' % (72 + k, 72 + k))
for j, base in enumerate((64, 66, 72, 74)): E('v_cvt_pk_bf16_f32 v%d, v%d, v%d' % (84 + j, base, base + 1))
for j, base in enumerate((64, 66, 72, 74)): unpack(base, base + 1, 84 + j)
for k in range(4): E('v_mul_f32 v%d, v%d, v%d' % (64 + k, 64 + k, 72 + k))
E('v_cvt_pk_bf16_f32 v10, v64, v65')
E('v_cvt_pk_bf16_f32 v11, v66, v67')
E('s_nop 1')
for t in range(5): E('v_mfma_f32_16x16x16_bf16 %s, %s, v[10:11], 0' % (vr(104 + 4 * t, 4), vr(52 + 2 * t, 2)))
E('s_nop 1')
E('s_mov_b32 exec_lo, 0x30003')
E('s_mov_b32 exec_hi, 0x30003')
for t in range(5):
    E('buffer_store_dwordx4 %s, v14, %s, s12 offen sc1' % (vr(104 + 4 * t, 4), srd(S_WS)))
    if t < 4: E('s_add_u32 s12, s12, %d' % ZS)
stamp(12)
L('L_end')
E('s_endpgm')
out.append('.section .rodata,"a"')
out.append('.p2align 6')
out.append('.amdhsa_kernel %s' % NAME)
out.append('  .amdhsa_next_free_vgpr 128')
out.append('  .amdhsa_next_free_sgpr 102')
out.append('  .amdhsa_accum_offset 128')
out.append('  .amdhsa_group_segment_fixed_size 0')
out.append('  .amdhsa_kernarg_size 96')
out.append('  .amdhsa_user_sgpr_count 2')
out.append('  .amdhsa_user_sgpr_kernarg_segment_ptr 1')
out.append('  .amdhsa_system_sgpr_workgroup_id_x 1')
out.append('  .amdhsa_float_denorm_mode_32 3')
out.append('.end_amdhsa_kernel')
print('\n'.join(out))
```
